```python
import torch

def _softmax(x, axis=-1):
    return torch.softmax(x, dim=axis)
def _gelu(x):
    return torch.nn.functional.gelu(x, approximate="tanh")
def _silu(x):
    return torch.nn.functional.silu(x)
def _sigmoid(x):
    return torch.sigmoid(x)
def _layernorm(x, axis=-1, eps=1e-5):
    m = x.mean(dim=axis, keepdim=True)
    v = x.var(dim=axis, keepdim=True, unbiased=False)
    return (x - m) / torch.sqrt(v + eps)
def _scatter_add(tgt, idx, src, axis=0):
    return tgt.clone().index_add_(axis, idx, src)
def _segment_sum(src, seg, n):
    out = torch.zeros((n,) + src.shape[1:], dtype=src.dtype)
    return out.index_add_(0, seg, src)
def _pad(x, pw):
    flat = tuple(v for pair in reversed(pw) for v in pair)
    return torch.nn.functional.pad(x, flat)

kernel_name = 'standalone__gqa_softmax__near_ridge'

def setup_inputs():

    _w = (lambda a: (lambda t: t.to(torch.bfloat16) if t.is_floating_point() else t)(torch.as_tensor(a)))
    B, Hq, Hkv, Sq, Sk, D = 8, 32, 8, 384, 512, 128
    return {
        "q": _w((lambda *s: torch.randn(*s, dtype=torch.bfloat16) * 0.8)(B, Hq, Sq, D)),
        "k": _w((lambda *s: torch.randn(*s, dtype=torch.bfloat16) * 0.8)(B, Hkv, Sk, D)),
        "v": _w((lambda *s: torch.randn(*s, dtype=torch.bfloat16) * 0.05)(B, Hkv, Sk, D)),
    }

def reference(q, k, v):
    B, Hq, Sq, D = q.shape
    Hkv = k.shape[1]
    rep = Hq // Hkv
    k = (lambda x, n, axis: torch.repeat_interleave(x, n, dim=axis))(k, rep, axis=1)
    v = (lambda x, n, axis: torch.repeat_interleave(x, n, dim=axis))(v, rep, axis=1)
    scale = D ** -0.5
    scores = torch.einsum("bhqd,bhkd->bhqk", q, k) * scale
    p = _softmax(scores, axis=-1)
    return torch.einsum("bhqk,bhkd->bhqd", p, v)
```

```python
import sys, math, struct, argparse

KNAME = "standalone__gqa_softmax__near_ridge_kernel"

def f32bits(x): return struct.unpack("<I", struct.pack("<f", x))[0]

V_LANE = 0
V_KADDR = 1
V_VADDR = 9
V_DMAK = 13
V_DMAV = 15
V_QO = 16
V_L = 17
V_LB = 20
V_H = 22
V_E = 28
V_PT = 36
V_S = 40
V_P = 72
V_NEGM = 88
V_Q = 136
V_PF = 232
V_STG = 233
V_X = 236
A_O = 0
A_K = 192
A_V = 224

S_SRDQ, S_SRDK, S_SRDV, S_SRDO = 12, 16, 20, 24
S_WOFF, S_THR, S_LINK, S_PC, S_C, S_MASK = 28, 29, 30, 32, 34, 35
S_T = 36
S_J = 40
S_TS = 60

KREG, VREG = 0, 65536
NSLOT = 8

def vr(b, n=1): return [f"v{b+i}" for i in range(n)]
def ar(b, n=1): return [f"a{b+i}" for i in range(n)]
def vt(b, n): return f"v[{b}:{b+n-1}]" if n > 1 else f"v{b}"
def at(b, n): return f"a[{b}:{b+n-1}]" if n > 1 else f"a{b}"

class Op:
    __slots__ = ("text", "kind", "cost", "rd", "wr", "idx", "preds", "succs", "due", "nb", "gap", "pos", "tag", "extra", "prio", "nunp")
    def __init__(self, text, kind, rd=(), wr=(), cost=None, tag="", nb=None, extra=None):
        self.text, self.kind, self.rd, self.wr, self.tag = text, kind, list(rd), list(wr), tag
        self.cost = cost if cost is not None else {"valu": 4, "trans": 8, "perm": 8, "ds": 4, "dsw": 20, "vmem": 14, "store": 14,
                                                   "salu": 4, "sync": 12, "br": 4, "mfma": 0}[kind]
        self.preds, self.succs = [], []
        self.due, self.nb, self.gap, self.pos = 10**9, nb, None, None
        self.extra = extra
        self.prio = 0

VALU_KINDS = ("valu", "trans", "perm")

def hazard_dist(p, c, dep, reg):
    d = 0
    isreg = reg[0] in "va" and reg[1:].isdigit()
    if p.kind in VALU_KINDS and isreg:
        if dep == "RAW":
            if c.kind == "mfma": d = max(d, 2)
            if c.kind == "perm": d = max(d, 2)
            if p.kind == "trans" and c.kind != "trans": d = max(d, 1)
    if p.kind == "mfma" and isreg:
        if dep in ("RAW", "WAW"):
            if c.kind == "mfma":
                if dep == "RAW" and reg in c.extra["ab"]: d = max(d, 12)
                if dep == "WAW" and reg not in c.extra["c"]: d = max(d, 12)
            elif c.kind == "br" or c.kind == "sync": d = 0
            else: d = max(d, 12)
        if dep == "WAR" and reg in p.extra["c"] and c.kind in VALU_KINDS: d = max(d, 7)
    if p.kind == "store" and dep == "WAR" and isreg and reg in p.extra["data"]: d = max(d, 2)
    if p.kind == "dsw" and dep == "WAR" and isreg: d = max(d, 2)
    if reg == "m0" and dep == "RAW": d = max(d, 1)
    if reg == "vcc" and dep == "RAW" and c.kind == "br": d = max(d, 1)
    return d

class Gen:
    def __init__(self, P):
        self.P = P
        self.ops = []
        self.handlers = {}
        self.tramps = []

    def add(self, op):
        op.idx = len(self.ops); self.ops.append(op); return op

    def build(self):
        P = self.P
        a, b = P["a"], P["b"]
        pos = []
        for j in range(0, a): pos.append((j, [0]))
        for j in range(a, b): pos.append((j, [0, 1]))
        for j in range(b, 16): pos.append((j, [0, 1, 2]))
        for j in range(0, a): pos.append((j, [1, 2]))
        for j in range(a, b): pos.append((j, [2]))
        self.pos = pos
        blocks = []
        cnt = [0, 0, 0]
        for p, (j, ts) in enumerate(pos):
            for k, T in enumerate(ts):
                blocks.append(dict(T=T, j=j, p=p, fp=(k == 0), ft=(cnt[T] == 0), lt=(cnt[T] == 15)))
                cnt[T] += 1
        assert cnt == [16, 16, 16]
        self.blocks = blocks
        NB = len(blocks)
        keep = min(P["keep"], b)
        ring = list(range(keep, NSLOT)); assert len(ring) >= 2
        rp = 0
        seen = set()
        self.unit = []
        last_in_slot = {}
        for p, (j, ts) in enumerate(pos):
            if j < keep:
                slot = j; load = j not in seen; seen.add(j); prev = None
            else:
                slot = ring[rp % len(ring)]; rp += 1; load = True; prev = last_in_slot.get(slot)
            last_in_slot[slot] = p
            self.unit.append((slot, load, prev))
        self.qk = []; self.pv = []
        self.kreads = {}; self.vreads = {}
        for n, B in enumerate(blocks):
            T, p = B["T"], B["p"]
            slot, load, prev = self.unit[p]
            srcp = p if load else min(q for q in range(p) if pos[q][0] == pos[p][0])
            S = V_S + 16 * (n % 2); Pp = V_P + 8 * (n % 2); LB = V_LB + (n % 2)
            NM = V_NEGM + 16 * T; Q = V_Q + 32 * T; O = A_O + 64 * T
            same_prev = n > 0 and blocks[n - 1]["T"] == T
            same_next = n + 1 < NB and blocks[n + 1]["T"] == T
            if B["ft"]:
                self.prescale(T)
            if B["fp"]:
                self.kreads[p] = []
                for s in range(8):
                    self.kreads[p].append(self.add(Op(f"ds_read_b128 {at(A_K+4*s,4)}, v{V_KADDR+s} offset:{slot*8192}", "ds",
                                rd=[f"visK{srcp}"], wr=ar(A_K + 4 * s, 4), tag=f"K{p}.{s}", extra=dict(lds=("K", slot, p)))))
            explicit = B["ft"] or (same_prev and blocks[n - 1]["ft"])
            q = []
            for s in range(8):
                if s == 0:
                    ctext = "0" if explicit else vt(NM, 16); crd = [] if explicit else vr(NM, 16)
                else:
                    ctext = vt(S, 16); crd = vr(S, 16)
                ab = ar(A_K + 4 * s, 4) + vr(Q + 4 * s, 4)
                q.append(self.add(Op(f"v_mfma_f32_32x32x16_bf16 {vt(S,16)}, {at(A_K+4*s,4)}, {vt(Q+4*s,4)}, {ctext}", "mfma",
                                     rd=ab + crd, wr=vr(S, 16), tag=f"QK{n}.{s}", extra=dict(ab=set(ab), c=set(crd)))))
            self.qk.append(q)
            gate = [f"chk{n-1}"] if (same_prev and not blocks[n - 1]["ft"]) else []
            if B["ft"]:
                H = V_H
                self.add(Op(f"v_max3_f32 v{H}, v{S}, v{S+1}, v{S+2}", "valu", rd=vr(S, 3), wr=[f"v{H}"], tag=f"mx{n}"))
                self.add(Op(f"v_max3_f32 v{H+1}, v{S+3}, v{S+4}, v{S+5}", "valu", rd=vr(S + 3, 3), wr=[f"v{H+1}"], tag=f"mx{n}"))
                for r in range(6, 16, 4):
                    self.add(Op(f"v_max3_f32 v{H}, v{H}, v{S+r}, v{S+r+1}", "valu", rd=[f"v{H}"] + vr(S + r, 2), wr=[f"v{H}"], tag=f"mx{n}"))
                    if r + 3 < 16:
                        self.add(Op(f"v_max3_f32 v{H+1}, v{H+1}, v{S+r+2}, v{S+r+3}", "valu", rd=[f"v{H+1}"] + vr(S + r + 2, 2), wr=[f"v{H+1}"], tag=f"mx{n}"))
                self.add(Op(f"v_max_f32 v{H}, v{H}, v{H+1}", "valu", rd=vr(H, 2), wr=[f"v{H}"], tag=f"mx{n}"))
                self.add(Op(f"v_mov_b32 v{H+1}, v{H}", "valu", rd=[f"v{H}"], wr=[f"v{H+1}"], tag=f"mx{n}"))
                self.add(Op(f"v_permlane32_swap_b32 v{H}, v{H+1}", "perm", rd=vr(H, 2), wr=vr(H, 2), tag=f"mx{n}"))
                self.add(Op(f"v_max_f32 v{H}, v{H}, v{H+1}", "valu", rd=vr(H, 2), wr=[f"v{H}"], tag=f"mx{n}"))
                self.add(Op(f"v_sub_f32 v{NM}, 0, v{H}", "valu", rd=[f"v{H}"], wr=[f"v{NM}"], tag=f"nm{n}"))
                for r in range(1, 16):
                    self.add(Op(f"v_mov_b32 v{NM+r}, v{NM}", "valu", rd=[f"v{NM}"], wr=[f"v{NM+r}"], tag=f"nm{n}"))
            for k in range(8):
                E = V_E + 2 * (k % 4)
                for e in range(2):
                    r = S + 2 * k + e
                    if explicit:
                        self.add(Op(f"v_add_f32 v{r}, v{NM}, v{r}", "valu", rd=[f"v{NM}", f"v{r}"] + gate, wr=[f"v{r}"], tag=f"sub{n}"))
                    self.add(Op(f"v_exp_f32 v{E+e}, v{r}", "trans", rd=[f"v{r}"] + gate, wr=[f"v{E+e}"], tag=f"exp{n}"))
                if k == 0:
                    self.add(Op(f"v_add_f32 v{LB}, v{E}, v{E+1}", "valu", rd=vr(E, 2), wr=[f"v{LB}"], tag=f"sum{n}"))
                else:
                    self.add(Op(f"v_add_f32 v{LB}, v{LB}, v{E}", "valu", rd=[f"v{LB}", f"v{E}"], wr=[f"v{LB}"], tag=f"sum{n}"))
                    self.add(Op(f"v_add_f32 v{LB}, v{LB}, v{E+1}", "valu", rd=[f"v{LB}", f"v{E+1}"], wr=[f"v{LB}"], tag=f"sum{n}"))
                self.add(Op(f"v_cvt_pk_bf16_f32 v{Pp+k}, v{E}, v{E+1}", "valu", rd=vr(E, 2), wr=[f"v{Pp+k}"], tag=f"cvt{n}"))
            chk = []
            if not B["ft"]:
                self.add(Op(f"v_cmp_lt_f32 vcc, s{S_THR}, v{LB}", "valu", rd=[f"v{LB}"], wr=["vcc"], tag=f"cmp{n}"))
                key = (T, n % 2, same_next)
                self.handlers[key] = True
                rd = ["vcc", f"v{LB}"] + vr(S, 16) + vr(Pp, 8) + ar(O, 64) + vr(NM, 16) + [f"v{V_L+T}"] + vr(V_H, 3)
                self.tramps.append((n, key))
                br = self.add(Op(f"s_cbranch_vccnz L_tr{n}\nL_bk{n}:", "br", rd=rd, wr=[f"chk{n}"], tag=f"br{n}", extra=dict(n=n, same_next=same_next)))
                B["br"] = br
                chk = [f"chk{n}"]
                self.add(Op(f"v_add_f32 v{V_L+T}, v{V_L+T}, v{LB}", "valu", rd=[f"v{V_L+T}", f"v{LB}"] + chk, wr=[f"v{V_L+T}"], tag=f"lacc{n}"))
            else:
                self.add(Op(f"v_mov_b32 v{V_L+T}, v{LB}", "valu", rd=[f"v{LB}"], wr=[f"v{V_L+T}"], tag=f"lacc{n}"))
            order = [(db, t) for db in range(4) for t in range(2)] if B["lt"] else [(db, t) for t in range(2) for db in range(4)]
            if B["fp"]:
                self.vreads[p] = []
                for (db, t) in order:
                    for u in range(2):
                        d = A_V + 4 * (4 * t + db) + 2 * u
                        self.vreads[p].append(self.add(Op(f"ds_read_b64_tr_b16 {at(d,2)}, v{V_VADDR+db} offset:{slot*8192+(16*t+8*u)*256}", "ds",
                                    rd=[f"visV{srcp}"], wr=ar(d, 2), tag=f"V{p}.{t}{db}{u}", extra=dict(lds=("V", slot, p)))))
            pv = []
            for (db, t) in order:
                D = O + 16 * db; A = A_V + 4 * (4 * t + db)
                first = B["ft"] and t == 0
                ab = ar(A, 4) + vr(Pp + 4 * t, 4); crd = [] if first else ar(D, 16)
                pv.append(self.add(Op(f"v_mfma_f32_32x32x16_bf16 {at(D,16)}, {at(A,4)}, {vt(Pp+4*t,4)}, {'0' if first else at(D,16)}", "mfma",
                                      rd=ab + crd + chk, wr=ar(D, 16), tag=f"PV{n}.{db}{t}", extra=dict(ab=set(ab), c=set(crd)))))
            self.pv.append(pv)
            if B["lt"]:
                self.epilogue(T)
        self.extra_edges = []
        for n, B in enumerate(blocks):
            if "br" in B and B["br"].extra["same_next"]:
                self.extra_edges.append((self.qk[n + 1][-1], B["br"]))

    def prescale(self, T):
        Q = V_Q + 32 * T
        for i in range(32):
            r = Q + i; t = V_PT + 2 * (i % 2)
            ld = [f"ldQ{T}.{i//4}"]
            self.add(Op(f"v_lshlrev_b32 v{t}, 16, v{r}", "valu", rd=[f"v{r}"] + ld, wr=[f"v{t}"], tag=f"ps{T}"))
            self.add(Op(f"v_and_b32 v{t+1}, s{S_MASK}, v{r}", "valu", rd=[f"v{r}"] + ld, wr=[f"v{t+1}"], tag=f"ps{T}"))
            self.add(Op(f"v_mul_f32 v{t}, s{S_C}, v{t}", "valu", rd=[f"v{t}"], wr=[f"v{t}"], tag=f"ps{T}"))
            self.add(Op(f"v_mul_f32 v{t+1}, s{S_C}, v{t+1}", "valu", rd=[f"v{t+1}"], wr=[f"v{t+1}"], tag=f"ps{T}"))
            self.add(Op(f"v_cvt_pk_bf16_f32 v{r}, v{t}, v{t+1}", "valu", rd=vr(t, 2), wr=[f"v{r}"], tag=f"ps{T}"))

    def epilogue(self, T):
        Q = V_Q + 32 * T; O = A_O + 64 * T; L = V_L + T; NM = V_NEGM + 16 * T
        R = NM
        tg = f"ep{T}"
        self.add(Op(f"v_mov_b32 v{R+1}, v{L}", "valu", rd=[f"v{L}"], wr=[f"v{R+1}"], tag=tg))
        self.add(Op(f"v_permlane32_swap_b32 v{L}, v{R+1}", "perm", rd=[f"v{L}", f"v{R+1}"], wr=[f"v{L}", f"v{R+1}"], tag=tg))
        self.add(Op(f"v_add_f32 v{R+1}, v{L}, v{R+1}", "valu", rd=[f"v{L}", f"v{R+1}"], wr=[f"v{R+1}"], tag=tg))
        self.add(Op(f"v_rcp_f32 v{R}, v{R+1}", "trans", rd=[f"v{R+1}"], wr=[f"v{R}"], tag=tg))
        c = 0
        for db in range(4):
            for jj in range(2):
                X = Q + 8 * (c % 2); OUT = Q + 16 + 4 * (c % 4); c += 1
                for i in range(8):
                    self.add(Op(f"v_accvgpr_read_b32 v{X+i}, a{O+16*db+8*jj+i}", "valu", rd=[f"a{O+16*db+8*jj+i}"], wr=[f"v{X+i}"], tag=tg))
                for i in range(8):
                    self.add(Op(f"v_mul_f32 v{X+i}, v{R}, v{X+i}", "valu", rd=[f"v{R}", f"v{X+i}"], wr=[f"v{X+i}"], tag=tg))
                for i in range(4):
                    self.add(Op(f"v_cvt_pk_bf16_f32 v{OUT+i}, v{X+2*i}, v{X+2*i+1}", "valu", rd=vr(X + 2 * i, 2), wr=[f"v{OUT+i}"], tag=tg))
                self.add(Op(f"buffer_store_dwordx4 {vt(OUT,4)}, v{V_QO}, s[{S_SRDO}:{S_SRDO+3}], s{S_T+T} offen offset:{64*db+32*jj}{self.P['stflag']}",
                            "store", rd=vr(OUT, 4), tag=tg, extra=dict(data=set(vr(OUT, 4)))))

    def load_ops(self, item):
        kind, x = item
        ops = []
        if kind == "Q":
            for s in range(8):
                r = V_Q + 32 * x + 4 * s
                ops.append(Op(f"buffer_load_dwordx4 {vt(r,4)}, v{V_QO}, s[{S_SRDQ}:{S_SRDQ+3}], s{S_T+x} offen offset:{32*s}{self.P['qflag']}", "vmem",
                              wr=vr(r, 4) + [f"ldQ{x}.{s}"], tag=f"ldQ{x}.{s}", extra=dict(done=f"ldQ{x}.{s}")))
        elif kind == "PF":
            ops.append(Op(f"global_load_dword v{V_PF}, v{V_PF+1+x}, s[{S_PC}:{S_PC+1}]", "vmem", wr=[], tag="pf", extra=dict(done=None)))
        else:
            p = x; slot, load, prev = self.unit[p]; j = self.pos[p][0]
            base = (KREG if kind == "K" else VREG) + slot * 8192
            srd = S_SRDK if kind == "K" else S_SRDV
            ops.append(Op(f"s_add_u32 m0, s{S_WOFF}, {base}", "salu", wr=["m0"], tag=f"m0{kind}{p}"))
            for xx in range(2):
                va = V_DMAK + xx if kind == "K" else V_DMAV
                ops.append(Op(f"buffer_load_dwordx4 v{va}, s[{srd}:{srd+3}], s{S_J+j} offen offset:{1024*xx} lds", "vmem", rd=["m0"],
                              wr=[f"dma{kind}{p}.{xx}"], tag=f"dma{kind}{p}.{xx}", extra=dict(done=f"dma{kind}{p}.{xx}", fill=(kind, slot, p, prev))))
        return ops

    def schedule(self):
        P = self.P
        NB = len(self.blocks)
        bb = []
        first_gap_of_group = {}
        for n in range(-1, NB + 1):
            q = list(self.qk[n + 1]) if n + 1 < NB else []
            v = list(self.pv[n - 1]) if n - 1 >= 0 else []
            first_gap_of_group[n] = len(bb)
            if q and v:
                for ch in P["pattern"]:
                    bb.append(q.pop(0) if ch == "Q" else v.pop(0))
                assert not q and not v
            else:
                bb += q + v
        for g, m in enumerate(bb): m.gap = g
        self.bb = bb
        NG = len(bb)
        gK = {p: min(m.gap for n, B in enumerate(self.blocks) if B["p"] == p for m in self.qk[n]) for p in range(len(self.pos))}
        gV = {p: min(m.gap for n, B in enumerate(self.blocks) if B["p"] == p for m in self.pv[n]) for p in range(len(self.pos))}
        loads = [p for p in range(len(self.pos)) if self.unit[p][1]]
        a, b = P["a"], P["b"]
        seq = []
        kv = []
        for p in loads: kv += [("K", p, gK[p]), ("V", p, gV[p])]
        kv.sort(key=lambda t: t[2])
        q_after = {0: P["q0_after"], 1: P["q1_after"], 2: P["q2_after"]}
        for i, (kind, p, g) in enumerate(kv):
            for T in range(3):
                if q_after[T] == i: seq.append(("Q", T))
            if i == P["pf_after"]:
                for x in range(P["npf"]): seq.append(("PF", x))
            seq.append((kind, p))
        self.seq = seq
        LEAD = P["lead"]
        syncs = []
        for kind, p, g in kv:
            want = g - LEAD - 1
            if kind == "V" and syncs:
                c = [s for s in syncs if s[0] <= want]
                if c and want - c[-1][0] <= P["sync_slack"]:
                    c[-1][1].append((kind, p)); continue
            if syncs and abs(syncs[-1][0] - want) <= 2 and syncs[-1][0] <= want:
                syncs[-1][1].append((kind, p)); continue
            syncs.append([want, [(kind, p)]])
        syncs.sort(key=lambda s: s[0])
        lops = []
        for it in seq: lops += self.load_ops(it)
        prev = None
        for o in lops:
            o.idx = len(self.ops); self.ops.append(o)
        sops = []
        for g, us in syncs:
            rd = [f"dma{k}{p}.{x}" for k, p in us for x in range(2)]
            o = Op("s_barrier", "sync", rd=rd, wr=[f"vis{k}{p}" for k, p in us], tag="sync" + ",".join(f"{k}{p}" for k, p in us), nb=g - P["sync_early"])
            o.idx = len(self.ops); self.ops.append(o); sops.append(o)
        comp = [o for o in self.ops if o not in lops and o not in sops]
        def link(p, c, dep, reg):
            c.preds.append((p, hazard_dist(p, c, dep, reg))); p.succs.append(c)
        lastw, readers = {}, {}
        pseudo_w = {}
        for o in lops + sops:
            for r in o.wr:
                if not (r[0] in "va" and r[1:].isdigit()) and r != "m0": pseudo_w[r] = o
        for o in comp:
            for r in o.rd:
                if r in pseudo_w: link(pseudo_w[r], o, "RAW", r)
                elif r in lastw: link(lastw[r], o, "RAW", r)
            for r in o.wr:
                if r in lastw: link(lastw[r], o, "WAW", r)
                for q in readers.get(r, []):
                    if q is not o: link(q, o, "WAR", r)
            for r in o.rd: readers.setdefault(r, []).append(o)
            for r in o.wr: lastw[r] = o; readers[r] = []
        for p_, c_ in self.extra_edges: c_.preds.append((p_, 0)); p_.succs.append(c_)
        prev = None; m0w = None
        for o in lops:
            if prev is not None: o.preds.append((prev, 1 if (prev.kind == "salu" and "m0" in o.rd) else 0)); prev.succs.append(o)
            if o.kind == "salu": m0w = o
            if "m0" in o.rd and m0w is not prev: o.preds.append((m0w, 1)); m0w.succs.append(o)
            prev = o
        prev = None
        for o in sops:
            for r in o.rd: link(pseudo_w[r], o, "RAW", r)
            if prev is not None: o.preds.append((prev, 0)); prev.succs.append(o)
            prev = o
        for p in range(len(self.pos)):
            for o in self.kreads[p] + self.vreads[p]:
                g = min(s.gap for s in o.succs if s.kind == "mfma")
                o.nb = g - P["read_early"]
        for o in self.ops:
            if o.tag == "ps1": o.nb = gK[a] - P["ps1_early"]
            if o.tag == "ps2": o.nb = gK[b] - P["ps2_early"]
        self.fgg = first_gap_of_group
        order = self.toposort()
        for o in reversed(order):
            if o.kind == "mfma": o.due = o.gap; continue
            d = 10**9
            for s in o.succs:
                if s.kind == "mfma":
                    dd = s.gap - 1
                    if o.kind == "ds": dd = s.gap - LEAD
                    d = min(d, dd)
                else:
                    dd = s.due
                    if s.kind not in VALU_KINDS and o.kind in VALU_KINDS: dd -= 1
                    if o.kind == "vmem": dd -= P["vm_lead"]
                    if o.kind == "salu": dd -= 1
                    d = min(d, dd)
            o.due = d
        for o in self.ops:
            if o.due >= 10**9: o.due = NG + 1000 + o.idx
        self.lops, self.sops = lops, sops
        self.emit(order)

    def toposort(self):
        indeg = {id(o): len(o.preds) for o in self.ops}
        st = [o for o in self.ops if not o.preds]
        out = []
        while st:
            o = st.pop(); out.append(o)
            for s in o.succs:
                indeg[id(s)] -= 1
        cnt = {id(o): 0 for o in self.ops}
        for o in self.ops:
            for s in o.succs: cnt[id(s)] += 1
        st = [o for o in self.ops if cnt[id(o)] == 0]
        out = []
        while st:
            o = st.pop(); out.append(o)
            for s in o.succs:
                cnt[id(s)] -= 1
                if cnt[id(s)] == 0: st.append(s)
        assert len(out) == len(self.ops), "dependency cycle"
        return out

    def emit(self, order):
        P = self.P
        lin = []
        vmq = []
        dsq = []
        done = set()
        st = dict(cyc=0)
        slot_readers = {}
        for o in self.ops:
            if o.kind == "ds" and o.extra and "lds" in o.extra:
                slot_readers.setdefault((o.extra["lds"][0], o.extra["lds"][2]), []).append(o)
        released = set()
        def put(text, op=None):
            lin.append((text, op))
            if op is not None: op.pos = len(lin) - 1
        def need_wait(o):
            vm = lg = None
            for p, _ in o.preds:
                if id(p) in done: continue
                if p.kind == "vmem" and o not in self.lops_set and (set(p.wr) & set(o.rd)):
                    k = len(vmq) - 1 - vmq.index(p); vm = k if vm is None else min(vm, k)
                if p.kind == "ds" and (set(p.wr) & set(o.rd)):
                    k = len(dsq) - 1 - dsq.index(p); lg = k if lg is None else min(lg, k)
            return vm, lg
        def do_wait(vm, lg):
            if vm is None and lg is None: return False
            t = "s_waitcnt"
            if vm is not None:
                assert vm <= 63
                t += f" vmcnt({vm})"
                while len(vmq) > vm: done.add(id(vmq.pop(0)))
            if lg is not None:
                lg = min(lg, 15)
                t += f" lgkmcnt({lg})"
                while len(dsq) > lg: done.add(id(dsq.pop(0)))
            put(t); return True
        def dist_ok(o):
            n = len(lin)
            return max([d - (n - p.pos - 1) for p, d in o.preds] + [0])
        def place(o):
            vm, lg = need_wait(o)
            c = 0
            if do_wait(vm, lg): c += 4
            k = dist_ok(o)
            if k > 0:
                put(f"s_nop {k-1}"); c += 4 * k
                st["nops"] = st.get("nops", 0) + k
            put(o.text, o)
            for x in o.succs: x.nunp -= 1
            if o.kind in ("vmem", "store"):
                vmq.append(o); assert len(vmq) <= 63, "too many vmem in flight"
            if o.kind in ("ds", "dsw"): dsq.append(o)
            if o.kind == "sync":
                for key, rs in slot_readers.items():
                    if all(id(r) in done for r in rs): released.add(key)
            return c + o.cost
        self.lops_set = set(self.lops)
        for o in self.ops: o.nunp = 0
        for o in self.ops:
            for x in o.succs: x.nunp += 1
        pending = [o for o in order if o.kind != "mfma"]
        pending.sort(key=lambda o: (o.due, o.idx))
        def ready(o, g, strict):
            for p, d in o.preds:
                if p.pos is None: return False
                if strict and p.kind in VALU_KINDS and p.gap == g and o.kind not in VALU_KINDS: return False
            if o.kind == "vmem" and o.extra.get("fill") and o.extra["fill"][3] is not None:
                k, slot, p, prev = o.extra["fill"]
                if (k, prev) not in released: return False
            if o.kind == "salu" and o.tag.startswith("m0"):
                nx = o.succs[0]
                k, slot, p, prev = nx.extra["fill"]
                if prev is not None and (k, prev) not in released: return False
            if o.kind in ("vmem", "store") and len(vmq) >= 62: return False
            return True
        def force(o, g):
            c = 0
            for p, _ in sorted(o.preds, key=lambda t: t[0].idx):
                if p.pos is None:
                    assert p.kind != "mfma", f"backbone order violates deps: {o.tag} needs {p.tag}"
                    c += force(p, g)
            if o.kind != "mfma":
                assert ready(o, g, False), f"cannot force {o.tag} at gap {g}"
                o.gap = g; pending.remove(o); c += place(o)
            return c
        g = -1
        npro = 0
        for o in list(self.lops):
            if npro >= P["pro_loads"] and o.kind == "salu": break
            if not ready(o, g, False): break
            o.gap = g; pending.remove(o); place(o); npro += o.kind == "vmem"
        put("; ---- prologue loads issued")
        total = 0
        over = 0
        self.gapcost = []
        for g, m in enumerate(self.bb):
            c = force(m, g - 1)
            over += c
            vm, lg = need_wait(m)
            if do_wait(vm, lg): over += 4
            k = dist_ok(m)
            if k > 0: put(f"s_nop {k-1}"); over += 4 * k; st["nops"] = st.get("nops", 0) + k
            put(m.text, m)
            for x in m.succs: x.nunp -= 1
            used = 0; free_salu = True
            if g + 1 < len(self.bb):
                nx = self.bb[g + 1]
                if all(p.pos is not None for p, _ in nx.preds if p.kind == "ds"):
                    vm, lg = need_wait(nx)
                    if do_wait(vm, lg): free_salu = False
            cap = P["cap"]
            for phase in (0, 1):
                progress = True
                while progress:
                    progress = False
                    for o in pending:
                        if o.nunp: continue
                        isv = o.kind in VALU_KINDS
                        if isv != (phase == 1): continue
                        if o.nb is not None and g < o.nb and o.due > g: continue
                        if not ready(o, g, True): continue
                        cost = o.cost
                        if o.kind in ("salu", "br") and free_salu: cost = 0
                        must = o.due <= g
                        if phase == 0 and not must:
                            resv = sum(x.cost for x in pending[:40] if x.kind in VALU_KINDS and x.due <= g)
                            if used + cost + resv > cap: continue
                            if o.kind in ("vmem", "store", "dsw") and used > 4: continue
                        elif not must and used + cost > cap: continue
                        if not must and dist_ok(o) > 0: continue
                        o.gap = g; pending.remove(o)
                        cc = place(o)
                        if o.kind in ("salu", "br") and free_salu: cc -= 4; free_salu = False
                        elif not isv: free_salu = False
                        used += cc
                        progress = True
                        break
            total += max(32, 8 + used) + c
            self.gapcost.append(max(32, 8 + used) + c)
        g = len(self.bb)
        tail = 0
        while pending:
            o = pending[0]
            tail += force(o, g)
        self.lin = lin
        self.stats = dict(backbone=total, forced=over, tail=tail, nops=st.get("nops", 0), n=len(lin))

    def verify(self):
        import re
        lin = self.lin
        isreg = lambda r: r[0] in "va" and r[1:].isdigit()
        comp = [o for o in self.ops if o not in self.lops_set and o.kind != "sync"]
        lw = {}; want = {}
        for o in self.lops:
            for r in o.wr:
                if isreg(r): lw[r] = o
        for o in comp:
            want[id(o)] = {r: lw.get(r) for r in o.rd if isreg(r) or r == "vcc"}
            for r in o.wr: lw[r] = o
        final_logical = dict(lw)
        lw = {}; rdrs = {}
        slot = 0
        vm, lg = [], []
        done = set()
        vis = {}
        landed = {}
        inflight = {}
        reads_since = {}
        posn = {}
        for t, o in lin:
            if o is None:
                m = re.match(r"s_nop (\d+)", t)
                if m: slot += int(m.group(1)) + 1; continue
                if t.startswith("s_waitcnt"):
                    m = re.search(r"vmcnt\((\d+)\)", t)
                    if m:
                        while len(vm) > int(m.group(1)): done.add(id(vm.pop(0)))
                    m = re.search(r"lgkmcnt\((\d+)\)", t)
                    if m:
                        while len(lg) > int(m.group(1)): done.add(id(lg.pop(0)))
                    slot += 1
                continue
            posn[id(o)] = slot
            for r in o.rd:
                if isreg(r) or r == "vcc":
                    p = lw.get(r)
                    if id(o) in want: assert want[id(o)][r] is p, f"value flow broken: {o.tag} reads {r} from {p and p.tag}, wants {want[id(o)][r] and want[id(o)][r].tag}"
                    if p is not None:
                        d = hazard_dist(p, o, "RAW", r)
                        assert slot - posn[id(p)] - 1 >= d, f"RAW hazard {p.tag}->{o.tag} on {r}"
                        if p.kind in ("ds", "vmem") and o.kind != "br": assert id(p) in done, f"{o.tag} reads {r} before load {p.tag} completed"
                if r == "m0":
                    assert slot - posn[id(lw[r])] - 1 >= 1
            for r in o.wr:
                if isreg(r):
                    p = lw.get(r)
                    if p is not None:
                        assert slot - posn[id(p)] - 1 >= hazard_dist(p, o, "WAW", r), f"WAW {p.tag}->{o.tag}"
                        if p.kind in ("ds", "vmem"): assert id(p) in done, f"{o.tag} overwrites {r} while load {p.tag} in flight"
                    for q in rdrs.get(r, []):
                        if q is not o: assert slot - posn[id(q)] - 1 >= hazard_dist(q, o, "WAR", r), f"WAR {q.tag}->{o.tag}"
            for r in o.rd: rdrs.setdefault(r, []).append(o)
            for r in o.wr: lw[r] = o; rdrs[r] = []
            if o.kind in ("vmem", "store"): vm.append(o); assert len(vm) <= 63
            if o.kind in ("ds", "dsw"): lg.append(o)
            if o.kind == "vmem" and o.extra.get("fill"):
                k, sl, p, prev = o.extra["fill"]
                assert not reads_since.get((k, sl)), f"{o.tag} refills slot with uncovered readers"
                vis.pop((k, sl), None)
                inflight.setdefault((k, sl), {}).setdefault(p, []).append(o)
            if o.kind == "sync":
                for key, d in inflight.items():
                    for p, l in list(d.items()):
                        if len(l) == 2 and all(id(x) in done for x in l): vis[key] = self.pos[p][0]; del d[p]
                for key in list(reads_since):
                    reads_since[key] = [x for x in reads_since[key] if id(x) not in done]
            if o.kind == "ds" and o.extra and "lds" in o.extra:
                k, sl, p = o.extra["lds"]
                assert vis.get((k, sl)) == self.pos[p][0], f"{o.tag} reads slot not visible / wrong tile"
                reads_since.setdefault((k, sl), []).append(o)
            slot += 1
        assert all(o.pos is not None for o in self.ops)
        return True

    def handler(self, key):
        T, par, same_next = key
        S = V_S + 16 * par; S2 = V_S + 16 * (par ^ 1); Pp = V_P + 8 * par; LB = V_LB + par
        NM = V_NEGM + 16 * T; O = A_O + 64 * T; H = V_H
        L = [f"L_h{T}{par}{int(same_next)}:", "s_nop 15", "s_nop 15"]
        L.append(f"v_max3_f32 v{H}, v{S}, v{S+1}, 0")
        for r in range(2, 16, 2): L.append(f"v_max3_f32 v{H}, v{H}, v{S+r}, v{S+r+1}")
        L += [f"v_mov_b32 v{H+1}, v{H}", "s_nop 1", f"v_permlane32_swap_b32 v{H}, v{H+1}", "s_nop 1", f"v_max_f32 v{H}, v{H}, v{H+1}",
              f"v_sub_f32 v{H+1}, 0, v{H}", f"v_exp_f32 v{H+1}, v{H+1}"]
        for r in range(16): L.append(f"v_sub_f32 v{NM+r}, v{NM+r}, v{H}")
        for r in range(16): L.append(f"v_sub_f32 v{S+r}, v{S+r}, v{H}")
        if same_next:
            for r in range(16): L.append(f"v_sub_f32 v{S2+r}, v{S2+r}, v{H}")
        L.append(f"v_mul_f32 v{V_L+T}, v{V_L+T}, v{H+1}")
        for r in range(64):
            L += [f"v_accvgpr_read_b32 v{H+2}, a{O+r}", f"v_mul_f32 v{H+2}, v{H+2}, v{H+1}", f"v_accvgpr_write_b32 a{O+r}, v{H+2}"]
        L.append(f"v_mov_b32 v{LB}, 0")
        for k in range(8):
            L += [f"v_exp_f32 v{H}, v{S+2*k}", f"v_exp_f32 v{H+2}, v{S+2*k+1}", "s_nop 0", f"v_add_f32 v{LB}, v{LB}, v{H}",
                  f"v_add_f32 v{LB}, v{LB}, v{H+2}", f"v_cvt_pk_bf16_f32 v{Pp+k}, v{H}, v{H+2}"]
        L += ["s_nop 3", f"s_setpc_b64 s[{S_LINK}:{S_LINK+1}]"]
        return L

    def text(self):
        P = self.P
        c = math.log2(math.e) / math.sqrt(128.0)
        lds = 131072
        H = []
        A = H.append
        A(f"; @launch grid=(256,1,1) block=(256,1,1) lds={lds}")
        A('.amdgcn_target "amdgcn-amd-amdhsa--gfx950"')
        A(".text"); A(f".globl {KNAME}"); A(".p2align 8"); A(f".type {KNAME},@function"); A(f"{KNAME}:")
        pro = f"""
s_cmp_ge_u32 s2, 256
s_cbranch_scc1 L_end
s_load_dwordx8 s[4:11], s[0:1], 0
s_getpc_b64 s[{S_PC}:{S_PC+1}]
v_lshrrev_b32 v{V_X}, 6, v0                 ; wave
v_and_b32 v{V_LANE}, 63, v0                 ; lane
s_and_b32 s3, s2, 7
v_readfirstlane_b32 s{S_WOFF}, v{V_X}
s_lshr_b32 s2, s2, 3                        ; slot 0..31
s_lshl_b32 s3, s3, 5
s_add_u32 s2, s2, s3
s_lshr_b32 s3, s2, 2
s_mul_i32 s56, s2, 98304
s_lshl_b32 s57, s3, 17
v_and_b32 v{V_X+1}, 31, v{V_LANE}           ; l%32
v_lshrrev_b32 v{V_X+2}, 5, v{V_LANE}        ; h
v_and_b32 v{V_X+3}, 15, v{V_LANE}           ; l%16
v_lshrrev_b32 v{V_X+4}, 4, v{V_LANE}        ; G = l/16
; q/o offset = (w*32 + l%32)*256 + h*16
v_lshl_add_u32 v{V_QO}, v{V_X}, 5, v{V_X+1}
v_lshlrev_b32 v{V_QO}, 8, v{V_QO}
v_lshl_add_u32 v{V_QO}, v{V_X+2}, 4, v{V_QO}
; K dma offsets: row0 = 8w + G ; x=0: row0*256 + ((l%16)^(row0&15))*16 ; x=1: row0*256 + ((l%16)^((row0+4)&15))*16
v_lshl_add_u32 v{V_X+5}, v{V_X}, 3, v{V_X+4}
v_and_b32 v{V_X+6}, 15, v{V_X+5}
v_xor_b32 v{V_X+7}, v{V_X+6}, v{V_X+3}
v_lshlrev_b32 v{V_X+8}, 8, v{V_X+5}
v_lshl_add_u32 v{V_DMAK}, v{V_X+7}, 4, v{V_X+8}
v_xor_b32 v{V_X+7}, 4, v{V_X+7}
v_lshl_add_u32 v{V_DMAK+1}, v{V_X+7}, 4, v{V_X+8}
; V dma offset: row0*256 + ((l%16) ^ (G<<2))*16
v_lshlrev_b32 v{V_X+7}, 2, v{V_X+4}
v_xor_b32 v{V_X+7}, v{V_X+7}, v{V_X+3}
v_lshl_add_u32 v{V_DMAV}, v{V_X+7}, 4, v{V_X+8}
s_lshl_b32 s{S_WOFF}, s{S_WOFF}, 11
s_mov_b32 s{S_T}, 0
s_mov_b32 s{S_T+1}, 32768
s_mov_b32 s{S_T+2}, 65536
"""
        for j in range(16): pro += f"s_mov_b32 s{S_J+j}, {j*8192}\n"
        pro += f"""
s_mov_b32 s{S_SRDQ+2}, 98304
s_mov_b32 s{S_SRDQ+3}, 0x00020000
s_mov_b32 s{S_SRDK+2}, 131072
s_mov_b32 s{S_SRDK+3}, 0x00020000
s_mov_b32 s{S_SRDV+2}, 131072
s_mov_b32 s{S_SRDV+3}, 0x00020000
s_mov_b32 s{S_SRDO+2}, 98304
s_mov_b32 s{S_SRDO+3}, 0x00020000
s_mov_b32 s{S_THR}, 0x{f32bits(2.0**40):08x}
s_mov_b32 s{S_C}, 0x{f32bits(c):08x}
s_mov_b32 s{S_MASK}, 0xffff0000
v_lshlrev_b32 v{V_PF+1}, 7, v0
v_lshl_add_u32 v{V_PF+1}, v{V_X}, 13, v{V_PF+1}
v_add_u32 v{V_PF+2}, 0x8000, v{V_PF+1}
s_waitcnt lgkmcnt(0)
s_add_u32 s{S_SRDK}, s6, s57
s_addc_u32 s{S_SRDK+1}, s7, 0
s_add_u32 s{S_SRDQ}, s4, s56
s_addc_u32 s{S_SRDQ+1}, s5, 0
s_add_u32 s{S_SRDV}, s8, s57
s_addc_u32 s{S_SRDV+1}, s9, 0
s_add_u32 s{S_SRDO}, s10, s56
s_addc_u32 s{S_SRDO+1}, s11, 0
"""
        addr = f"""
v_lshlrev_b32 v{V_X+8}, 8, v{V_X+1}
v_xor_b32 v{V_X+7}, v{V_X+2}, v{V_X+3}
"""
        for s in range(8):
            addr += f"v_xor_b32 v{V_X+9}, {2*s}, v{V_X+7}\nv_lshl_add_u32 v{V_KADDR+s}, v{V_X+9}, 4, v{V_X+8}\n"
        addr += f"""
; V frag addresses: VREG + (4(G/2)+r)*256 + (db^r)*64 + 32(G%2) + 16(c%2) + 8(c/2);  r=(l%16)/4, c=l%4
v_lshrrev_b32 v{V_X+5}, 2, v{V_X+3}         ; r
v_lshl_add_u32 v{V_X+6}, v{V_X+2}, 2, v{V_X+5}     ; 4h + r
v_lshlrev_b32 v{V_X+6}, 8, v{V_X+6}
v_and_b32 v{V_X+7}, 1, v{V_X+4}
v_lshl_add_u32 v{V_X+6}, v{V_X+7}, 5, v{V_X+6}
v_and_b32 v{V_X+7}, 1, v{V_LANE}
v_lshl_add_u32 v{V_X+6}, v{V_X+7}, 4, v{V_X+6}
v_bfe_u32 v{V_X+7}, v{V_LANE}, 1, 1
v_lshl_add_u32 v{V_X+6}, v{V_X+7}, 3, v{V_X+6}
v_add_u32 v{V_X+6}, {VREG}, v{V_X+6}
"""
        for db in range(4):
            addr += f"v_xor_b32 v{V_X+7}, {db}, v{V_X+5}\nv_lshl_add_u32 v{V_VADDR+db}, v{V_X+7}, 6, v{V_X+6}\n"
        for l in pro.strip().split("\n"): A("    " + l if l and not l.endswith(":") else l)
        for t, o in self.lin:
            if t.startswith("; ---- prologue loads issued"):
                for l in addr.strip().split("\n"): A("    " + l)
                continue
            for l in t.split("\n"):
                if l.endswith(":"): A(l)
                else: A("    " + l + (f"    ; {o.tag}" if (o is not None and P["comments"]) else ""))
        A("L_end:")
        A("    s_endpgm")
        for n, key in self.tramps:
            A(f"L_tr{n}:")
            A(f"    s_call_b64 s[{S_LINK}:{S_LINK+1}], L_h{key[0]}{key[1]}{int(key[2])}")
            A(f"    s_branch L_bk{n}")
        for key in sorted(self.handlers):
            for l in self.handler(key): A(l if l.endswith(":") else "    " + l)
        A("    s_endpgm")
        A(".p2align 8")
        A(f".fill {P['padwords']}, 4, 0xBF800000")
        A('.section .rodata,"a"'); A(".p2align 6"); A(f".amdhsa_kernel {KNAME}")
        A("  .amdhsa_next_free_vgpr 512"); A("  .amdhsa_next_free_sgpr 72"); A("  .amdhsa_accum_offset 256")
        A("  .amdhsa_group_segment_fixed_size 0"); A("  .amdhsa_kernarg_size 48"); A("  .amdhsa_user_sgpr_count 2")
        A("  .amdhsa_user_sgpr_kernarg_segment_ptr 1"); A("  .amdhsa_system_sgpr_workgroup_id_x 1"); A(".end_amdhsa_kernel")
        return "\n".join(H) + "\n"

DEFAULT = dict(a=6, b=9, keep=5, pattern="QQPQQPQQPQQPPPPP", lead=4, read_early=8, sync_slack=20, sync_early=0, vm_lead=40,
               q0_after=1, q1_after=11, q2_after=17, pf_after=3, npf=1, pro_loads=52, cap=24, ps1_early=40, ps2_early=60,
               stflag="", qflag="", comments=True, padwords=64)

def generate(**kw):
    P = dict(DEFAULT); P.update(kw)
    g = Gen(P); g.build(); g.schedule(); g.verify()
    return g

if __name__ == "__main__":
    kw = {}
    out = "k.s"
    for a in sys.argv[1:]:
        k, v = a.split("=", 1)
        if k == "out": out = v; continue
        try: v = int(v)
        except ValueError: pass
        kw[k] = v
    g = generate(**kw)
    hdr = open("standalone__gqa_softmax__near_ridge.s.ref").read().split("\n")
    hdr = [l for l in hdr if l.startswith("; Kernarg") or l.startswith(";   offset")]
    open(out, "w").write("\n".join(hdr) + "\n" + g.text())
    print(g.stats, "seq:", g.seq)
    ks = sorted(g.fgg)
    print("group costs:", [sum(g.gapcost[g.fgg[n]:(g.fgg[n+1] if n + 1 in g.fgg else None)]) for n in ks])
```

```python
import sys, math, struct, re

KNAME = "standalone__gqa_softmax__near_ridge_kernel"
def f32bits(x): return struct.unpack("<I", struct.pack("<f", x))[0]

V_LANE = 0
V_KADDR = 1
V_VADDR = 9
V_DMAK = 13
V_DMAV = 15
V_SLIN = 16
V_L = 17
V_LB = 20
V_H = 22
V_E = 28
V_PT = 36
V_S = 40
V_P = 72
V_NEGM = 88
V_Q = 136
V_QADDR = 232
V_QOFF = 240
V_PF = 244
V_X = 247
A_O = 0
A_K = 192
A_V = 224

S_SRDQ, S_SRDK, S_SRDV, S_SRDO = 12, 16, 20, 24
S_WOFF, S_THR, S_LINK, S_PC, S_C, S_MASK = 28, 29, 30, 32, 34, 35
S_T = 36
S_SW = 42
S_J = 44
S_TS = 62

KREG, VREG, STG = 0, 65536, 131072
NSLOT = 8

def vr(b, n=1): return [f"v{b+i}" for i in range(n)]
def ar(b, n=1): return [f"a{b+i}" for i in range(n)]
def vt(b, n): return f"v[{b}:{b+n-1}]" if n > 1 else f"v{b}"
def at(b, n): return f"a[{b}:{b+n-1}]" if n > 1 else f"a{b}"
def isreg(r): return r[0] in "va" and r[1:].isdigit()

COST = {"valu": 4, "trans": 8, "perm": 8, "ds": 4, "dsw": 20, "vmem": 14, "store": 14, "salu": 4, "sync": 12, "br": 4, "mfma": 0}
VALU_KINDS = ("valu", "trans", "perm")

class Op:
    def __init__(self, text, kind, rd=(), wr=(), tag="", nb=None, extra=None):
        self.text, self.kind, self.rd, self.wr, self.tag = text, kind, list(rd), list(wr), tag
        self.cost = COST[kind]
        self.preds, self.succs, self.waitfor = [], [], []
        self.due, self.nb, self.gap, self.pos = 10**9, nb, None, None
        self.extra = extra or {}

def hazard_dist(p, c, dep, reg):
    d = 0
    r = isreg(reg)
    if p.kind in VALU_KINDS and r and dep == "RAW":
        if c.kind in ("mfma", "perm"): d = 2
        if p.kind == "trans" and c.kind != "trans": d = max(d, 1)
    if p.kind == "mfma" and r:
        if dep in ("RAW", "WAW"):
            if c.kind == "mfma":
                if dep == "RAW" and reg in c.extra["ab"]: d = 12
                if dep == "WAW" and reg not in c.extra["c"]: d = 12
            elif c.kind in ("br", "sync"): d = 0
            else: d = 12
        if dep == "WAR" and reg in p.extra["c"] and c.kind in VALU_KINDS: d = max(d, 7)
    if p.kind in ("store", "dsw") and dep == "WAR" and r: d = max(d, 2)
    if reg == "m0" and dep == "RAW": d = 1
    if reg == "vcc" and dep == "RAW" and c.kind == "br": d = 1
    return d

class Gen:
    def __init__(self, P):
        self.P = P
        self.ops = []
        self.handlers = {}
        self.tramps = []
        self.qreads = {}
        self.stg_readers = []

    def add(self, op):
        op.idx = len(self.ops); self.ops.append(op); return op

    def build(self):
        P = self.P
        a, b = P["a"], P["b"]
        pos = []
        for j in range(0, a): pos.append((j, [0]))
        for j in range(a, b): pos.append((j, [0, 1]))
        mids = list(P["mids"])
        for j in range(b, 16): pos.append((j, [0] if j in mids else [0, 1, 2]))
        u = P["unpair"]
        for j in mids: pos.append((j, [1, 2]))
        for j in range(0, u): pos.append((j, [1]))
        for j in range(u, a): pos.append((j, [1, 2]))
        for j in list(range(0, u)) + list(range(a, b)): pos.append((j, [2]))
        self.pos = pos
        blocks = []
        cnt = [0, 0, 0]
        for p, (j, ts) in enumerate(pos):
            for k, T in enumerate(ts):
                blocks.append(dict(T=T, j=j, p=p, fp=(k == 0), ft=(cnt[T] == 0), lt=(cnt[T] == 15)))
                cnt[T] += 1
        assert cnt == [16, 16, 16]
        self.blocks = blocks
        NB = len(blocks)
        keep = min(P["keep"], b)
        self.unit = []; last_in_slot = {}
        lastuse = {}
        for p, (j, ts) in enumerate(pos): lastuse[j] = p
        where = {}
        self.refetch = set()
        for p, (j, ts) in enumerate(pos):
            if j in where:
                slot = where[j]; load = False; prev = None
            else:
                pinned = {where[jj] for jj in where if (jj < keep or jj in mids) and lastuse[jj] > p}
                cand = sorted((last_in_slot.get(sl, -1), sl) for sl in range(NSLOT) if sl not in pinned)
                slot = cand[0][1]; load = True; prev = last_in_slot.get(slot)
                if p > 15 and P["refetch_once"]: self.refetch.add(p)
            for jj in [x for x in where if where[x] == slot and x != j]: del where[jj]
            where[j] = slot
            last_in_slot[slot] = p
            self.unit.append((slot, load, prev))
        self.qk = []; self.pv = []
        self.kreads = {}; self.vreads = {}
        for n, B in enumerate(blocks):
            T, p = B["T"], B["p"]
            slot, load, prev = self.unit[p]
            srcp = p if load else max(q for q in range(p) if pos[q][0] == pos[p][0] and self.unit[q][1])
            S = V_S + 16 * (n % 2); Pp = V_P + 8 * (n % 2); LB = V_LB + (n % 2)
            NM = V_NEGM + 16 * T; Q = V_Q + 32 * T; O = A_O + 64 * T
            same_prev = n > 0 and blocks[n - 1]["T"] == T
            same_next = n + 1 < NB and blocks[n + 1]["T"] == T
            if B["ft"]: self.prescale(T)
            if B["fp"]:
                self.kreads[p] = [self.add(Op(f"ds_read_b128 {at(A_K+4*s,4)}, v{V_KADDR+s} offset:{slot*8192}", "ds", rd=[f"visK{srcp}"],
                                              wr=ar(A_K + 4 * s, 4), tag=f"K{p}.{s}", extra=dict(lds=("K", slot, p)))) for s in range(8)]
            explicit = B["ft"] or (same_prev and blocks[n - 1]["ft"])
            q = []
            for s in range(8):
                if s == 0: ctext = "0" if explicit else vt(NM, 16); crd = [] if explicit else vr(NM, 16)
                else: ctext = vt(S, 16); crd = vr(S, 16)
                ab = ar(A_K + 4 * s, 4) + vr(Q + 4 * s, 4)
                q.append(self.add(Op(f"v_mfma_f32_32x32x16_bf16 {vt(S,16)}, {at(A_K+4*s,4)}, {vt(Q+4*s,4)}, {ctext}", "mfma",
                                     rd=ab + crd, wr=vr(S, 16), tag=f"QK{n}.{s}", extra=dict(ab=set(ab), c=set(crd)))))
            self.qk.append(q)
            gate = [f"chk{n-1}"] if (same_prev and not blocks[n - 1]["ft"]) else []
            if B["ft"]:
                H = V_H; tg = f"mx{n}"
                self.add(Op(f"v_max3_f32 v{H}, v{S}, v{S+1}, v{S+2}", "valu", rd=vr(S, 3), wr=[f"v{H}"], tag=tg))
                self.add(Op(f"v_max3_f32 v{H+1}, v{S+3}, v{S+4}, v{S+5}", "valu", rd=vr(S + 3, 3), wr=[f"v{H+1}"], tag=tg))
                for r in range(6, 16, 4):
                    self.add(Op(f"v_max3_f32 v{H}, v{H}, v{S+r}, v{S+r+1}", "valu", rd=[f"v{H}"] + vr(S + r, 2), wr=[f"v{H}"], tag=tg))
                    if r + 3 < 16:
                        self.add(Op(f"v_max3_f32 v{H+1}, v{H+1}, v{S+r+2}, v{S+r+3}", "valu", rd=[f"v{H+1}"] + vr(S + r + 2, 2), wr=[f"v{H+1}"], tag=tg))
                self.add(Op(f"v_max_f32 v{H}, v{H}, v{H+1}", "valu", rd=vr(H, 2), wr=[f"v{H}"], tag=tg))
                self.add(Op(f"v_mov_b32 v{H+1}, v{H}", "valu", rd=[f"v{H}"], wr=[f"v{H+1}"], tag=tg))
                self.add(Op(f"v_permlane32_swap_b32 v{H}, v{H+1}", "perm", rd=vr(H, 2), wr=vr(H, 2), tag=tg))
                self.add(Op(f"v_max_f32 v{H}, v{H}, v{H+1}", "valu", rd=vr(H, 2), wr=[f"v{H}"], tag=tg))
                self.add(Op(f"v_sub_f32 v{NM}, 0, v{H}", "valu", rd=[f"v{H}"], wr=[f"v{NM}"], tag=f"nm{n}"))
                for r in range(1, 16):
                    self.add(Op(f"v_mov_b32 v{NM+r}, v{NM}", "valu", rd=[f"v{NM}"], wr=[f"v{NM+r}"], tag=f"nm{n}"))
            for k in range(8):
                E = V_E + 2 * (k % 4)
                for e in range(2):
                    r = S + 2 * k + e
                    if explicit:
                        self.add(Op(f"v_add_f32 v{r}, v{NM}, v{r}", "valu", rd=[f"v{NM}", f"v{r}"] + gate, wr=[f"v{r}"], tag=f"sub{n}"))
                    self.add(Op(f"v_exp_f32 v{E+e}, v{r}", "trans", rd=[f"v{r}"] + gate, wr=[f"v{E+e}"], tag=f"exp{n}"))
                if k == 0:
                    self.add(Op(f"v_add_f32 v{LB}, v{E}, v{E+1}", "valu", rd=vr(E, 2), wr=[f"v{LB}"], tag=f"sum{n}"))
                else:
                    self.add(Op(f"v_add_f32 v{LB}, v{LB}, v{E}", "valu", rd=[f"v{LB}", f"v{E}"], wr=[f"v{LB}"], tag=f"sum{n}"))
                    self.add(Op(f"v_add_f32 v{LB}, v{LB}, v{E+1}", "valu", rd=[f"v{LB}", f"v{E+1}"], wr=[f"v{LB}"], tag=f"sum{n}"))
                self.add(Op(f"v_cvt_pk_bf16_f32 v{Pp+k}, v{E}, v{E+1}", "valu", rd=vr(E, 2), wr=[f"v{Pp+k}"], tag=f"cvt{n}"))
            chk = []
            if not B["ft"]:
                self.add(Op(f"v_cmp_lt_f32 vcc, s{S_THR}, v{LB}", "valu", rd=[f"v{LB}"], wr=["vcc"], tag=f"cmp{n}"))
                key = (T, n % 2, same_next)
                self.handlers[key] = True
                rd = ["vcc", f"v{LB}"] + vr(S, 16) + vr(Pp, 8) + ar(O, 64) + vr(NM, 16) + [f"v{V_L+T}"] + vr(V_H + 3, 3)
                self.tramps.append((n, key))
                B["br"] = self.add(Op(f"s_cbranch_vccnz L_tr{n}\nL_bk{n}:", "br", rd=rd, wr=[f"chk{n}"], tag=f"br{n}", extra=dict(same_next=same_next)))
                chk = [f"chk{n}"]
                self.add(Op(f"v_add_f32 v{V_L+T}, v{V_L+T}, v{LB}", "valu", rd=[f"v{V_L+T}", f"v{LB}"] + chk, wr=[f"v{V_L+T}"], tag=f"lacc{n}"))
            else:
                self.add(Op(f"v_mov_b32 v{V_L+T}, v{LB}", "valu", rd=[f"v{LB}"], wr=[f"v{V_L+T}"], tag=f"lacc{n}"))
            order = [(db, t) for db in range(4) for t in range(2)] if B["lt"] else [(db, t) for t in range(2) for db in range(4)]
            if B["fp"]:
                self.vreads[p] = []
                for (db, t) in order:
                    for u in range(2):
                        d = A_V + 4 * (4 * t + db) + 2 * u
                        self.vreads[p].append(self.add(Op(f"ds_read_b64_tr_b16 {at(d,2)}, v{V_VADDR+db} offset:{slot*8192+(16*t+8*u)*256}", "ds",
                                    rd=[f"visV{srcp}"], wr=ar(d, 2), tag=f"V{p}.{t}{db}{u}", extra=dict(lds=("V", slot, p)))))
            pv = []
            for (db, t) in order:
                D = O + 16 * db; A = A_V + 4 * (4 * t + db)
                first = B["ft"] and t == 0
                ab = ar(A, 4) + vr(Pp + 4 * t, 4); crd = [] if first else ar(D, 16)
                pv.append(self.add(Op(f"v_mfma_f32_32x32x16_bf16 {at(D,16)}, {at(A,4)}, {vt(Pp+4*t,4)}, {'0' if first else at(D,16)}", "mfma",
                                      rd=ab + crd + chk, wr=ar(D, 16), tag=f"PV{n}.{db}{t}", extra=dict(ab=set(ab), c=set(crd)))))
            self.pv.append(pv)
            if B["lt"]: self.epilogue(T, n == NB - 1)
        self.extra_edges = []
        for n, B in enumerate(blocks):
            if "br" in B and B["br"].extra["same_next"]:
                self.extra_edges.append((self.qk[n + 1][-1], B["br"]))

    def prescale(self, T):
        Q = V_Q + 32 * T
        self.qreads[T] = []
        for half in range(2):
            ld = [f"ldQ{T}.{4*half+i}" for i in range(4)]
            for s in range(4 * half, 4 * half + 4):
                self.qreads[T].append(self.add(Op(f"ds_read_b128 {vt(Q+4*s,4)}, v{V_QADDR+s%4} offset:{4096*half}", "ds", rd=ld + [f"stg{half}"],
                                                  wr=vr(Q + 4 * s, 4), tag=f"qr{T}")))
            for i in range(16 * half, 16 * half + 16):
                r = Q + i; t = V_PT + 2 * (i % 2); tg = f"ps{T}"
                self.add(Op(f"v_lshlrev_b32 v{t}, 16, v{r}", "valu", rd=[f"v{r}"], wr=[f"v{t}"], tag=tg))
                self.add(Op(f"v_and_b32 v{t+1}, s{S_MASK}, v{r}", "valu", rd=[f"v{r}"], wr=[f"v{t+1}"], tag=tg))
                self.add(Op(f"v_mul_f32 v{t}, s{S_C}, v{t}", "valu", rd=[f"v{t}"], wr=[f"v{t}"], tag=tg))
                self.add(Op(f"v_mul_f32 v{t+1}, s{S_C}, v{t+1}", "valu", rd=[f"v{t+1}"], wr=[f"v{t+1}"], tag=tg))
                self.add(Op(f"v_cvt_pk_bf16_f32 v{r}, v{t}, v{t+1}", "valu", rd=vr(t, 2), wr=[f"v{r}"], tag=tg))

    def epilogue(self, T, last):
        Q = V_Q + 32 * T; O = A_O + 64 * T; L = V_L + T; R = V_NEGM + 16 * T
        tg = f"ep{T}"
        V_EB = R
        R = (V_QADDR + 4, V_X + 1, V_X + 5)[T]
        self.add(Op(f"v_mov_b32 v{R+2}, v{L}", "valu", rd=[f"v{L}"], wr=[f"v{R+2}"], tag=tg))
        self.add(Op(f"v_permlane32_swap_b32 v{L}, v{R+2}", "perm", rd=[f"v{L}", f"v{R+2}"], wr=[f"v{L}", f"v{R+2}"], tag=tg))
        self.add(Op(f"v_add_f32 v{R+2}, v{L}, v{R+2}", "valu", rd=[f"v{L}", f"v{R+2}"], wr=[f"v{R+2}"], tag=tg))
        self.add(Op(f"v_rcp_f32 v{R}, v{R+2}", "trans", rd=[f"v{R+2}"], wr=[f"v{R}"], tag=tg))
        pkf = self.P[f"pk_from{T}"]
        pk = pkf < 8
        if pk: self.add(Op(f"v_mov_b32 v{R+1}, v{R}", "valu", rd=[f"v{R}"], wr=[f"v{R+1}"], tag=tg))
        c = 0
        for db in range(4):
            for jj in range(2):
                X = Q + 8 * (c % 2); OUT = Q + 16 + 4 * (c % 4); c += 1
                for i in range(8):
                    self.add(Op(f"v_accvgpr_read_b32 v{X+i}, a{O+16*db+8*jj+i}", "valu", rd=[f"a{O+16*db+8*jj+i}"], wr=[f"v{X+i}"], tag=tg))
                if 2 * db + jj >= pkf:
                    for i in range(0, 8, 2):
                        self.add(Op(f"v_pk_mul_f32 {vt(X+i,2)}, {vt(R,2)}, {vt(X+i,2)}", "valu", rd=vr(R, 2) + vr(X + i, 2), wr=vr(X + i, 2), tag=tg))
                else:
                    for i in range(8):
                        self.add(Op(f"v_mul_f32 v{X+i}, v{R}, v{X+i}", "valu", rd=[f"v{R}", f"v{X+i}"], wr=[f"v{X+i}"], tag=tg))
                for i in range(4):
                    self.add(Op(f"v_cvt_pk_bf16_f32 v{OUT+i}, v{X+2*i}, v{X+2*i+1}", "valu", rd=vr(X + 2 * i, 2), wr=[f"v{OUT+i}"], tag=tg))
                sidx = 2 * db + jj; half = sidx // 4
                if T in self.P["direct"]:
                    self.add(Op(f"buffer_store_dwordx4 {vt(OUT,4)}, v{V_QADDR+7}, s[{S_SRDO}:{S_SRDO+3}], s{S_T+2*T} offen offset:{32*sidx}{self.P['dflag']}",
                                "store", rd=vr(OUT, 4), tag=tg + "s"))
                    continue
                self.add(Op(f"ds_write_b128 v{V_QADDR+sidx%4}, {vt(OUT,4)} offset:{4096*half}", "dsw", rd=vr(OUT, 4), wr=[f"stg{half}"], tag=tg))
                if sidx % 4 == 3:
                    for i in range(4):
                        B_ = (V_EB if half == 0 else Q) + 4 * i
                        self.add(Op(f"ds_read_b128 {vt(B_,4)}, v{V_SLIN} offset:{4096*half+1024*i}", "ds", rd=[f"stg{half}"], wr=vr(B_, 4), tag=tg + "r"))
                    for i in range(4):
                        B_ = (V_EB if half == 0 else Q) + 4 * i
                        self.add(Op(f"buffer_store_dwordx4 {vt(B_,4)}, v{V_QOFF+i}, s[{S_SRDO}:{S_SRDO+3}], s{S_T+2*T+half} offen offset:{1024*i}{self.P['stflag']}",
                                    "store", rd=vr(B_, 4), tag=tg + "s"))

    def load_ops(self, item):
        kind, x = item
        ops = []
        if kind == "Q":
            T, half = x
            ops.append(Op(f"s_add_u32 m0, s{S_SW}, {4096*half}", "salu", wr=["m0"], tag=f"m0Q{T}"))
            for i in range(4):
                ops.append(Op(f"buffer_load_dwordx4 v{V_QOFF+i}, s[{S_SRDQ}:{S_SRDQ+3}], s{S_T+2*T+half} offen offset:{1024*i}{self.P['qflag']} lds", "vmem",
                              rd=["m0"], wr=[f"ldQ{T}.{4*half+i}"], tag=f"ldQ{T}.{4*half+i}", extra=dict(kb=4.0)))
            if T > 0:
                for o in ops: o.waitfor = list(self.qreads[T - 1][4 * half:4 * half + 4])
        elif kind == "PF":
            ops.append(Op(f"global_load_dword v{V_PF}, v{V_PF+1+x}, s[{S_PC}:{S_PC+1}]", "vmem", tag="pf", extra=dict(kb=0.5)))
        else:
            p = x; slot, load, prev = self.unit[p]; j = self.pos[p][0]
            base = (KREG if kind == "K" else VREG) + slot * 8192
            srd = S_SRDK if kind == "K" else S_SRDV
            fill = (kind, slot, p, prev)
            ops.append(Op(f"s_add_u32 m0, s{S_WOFF}, {base}", "salu", wr=["m0"], tag=f"m0{kind}{p}", extra=dict(guard=fill)))
            for xx in range(2):
                va = V_DMAK + xx if kind == "K" else V_DMAV
                ops.append(Op(f"buffer_load_dwordx4 v{va}, s[{srd}:{srd+3}], s{S_J+j} offen offset:{1024*xx}{self.P['kvflag']} lds", "vmem", rd=["m0"],
                              wr=[f"dma{kind}{p}.{xx}"], tag=f"dma{kind}{p}.{xx}", extra=dict(fill=fill, guard=fill, kb=self.P["kv_kb"])))
        return ops

    def schedule(self):
        P = self.P
        NB = len(self.blocks)
        bb = []; fgg = {}
        J = next(n for n, B in enumerate(self.blocks) if B["T"] == 1)
        groups = []
        for n in range(-1, NB + 1):
            qn = n + 1 if n + 1 < NB else None; pn = n - 1 if n >= 1 else None
            if P["drain"] and n == J - 1: groups += [(n, None, J - 2), (None, None, J - 1), (None, J, None)]
            elif P["drain"] and n == J: groups.append((n, J + 1, None))
            else: groups.append((n, qn, pn))
        for n, qn, pn in groups:
            q = list(self.qk[qn]) if qn is not None else []
            v = list(self.pv[pn]) if pn is not None else []
            if n is not None: fgg[n] = len(bb)
            if q and v:
                for ch in P["pattern"]: bb.append(q.pop(0) if ch == "Q" else v.pop(0))
                assert not q and not v
            else: bb += q + v
        for g, m in enumerate(bb): m.gap = g
        self.bb, self.fgg = bb, fgg
        NG = len(bb)
        npos = len(self.pos)
        gK = {p: min(m.gap for n, B in enumerate(self.blocks) if B["p"] == p for m in self.qk[n]) for p in range(npos)}
        gV = {p: min(m.gap for n, B in enumerate(self.blocks) if B["p"] == p for m in self.pv[n]) for p in range(npos)}
        gT = {T: min(m.gap for n, B in enumerate(self.blocks) if B["T"] == T for m in self.qk[n]) for T in range(3)}
        LEAD = P["lead"]
        units = []
        for p in range(npos):
            if self.unit[p][1]: units += [(gK[p] - LEAD - 1, ("K", p)), (gV[p] - LEAD - 1, ("V", p))]
        qneed = {0: -100, 1: gT[1] - P["ps1_early"], 2: gT[2] - P["ps2_early"]}
        for T in range(3):
            units += [(qneed[T] - P["q_bias"] - P["q_split"], ("Q", (T, 0))), (qneed[T] - P["q_bias"], ("Q", (T, 1)))]
        units = [((-200 if not P["q_first"] else -110) if it == ("K", 0) else g, it) for g, it in units]
        units.sort(key=lambda t: t[0])
        seq = [it for _, it in units]
        q1 = [it for it in seq if it[0] == "Q" and it[1][0] == 1]
        rest = [it for it in seq if it not in q1]
        if seq.index(q1[0]) < 3 + P["kv_before_q1"]:
            k = 3 + P["kv_before_q1"]
            seq = rest[:k] + q1 + rest[k:]
        for x in range(P["npf"]): seq.insert(P["pf_at"], ("PF", x))
        self.seq = seq
        lops = []; unit_last = {}
        for it in seq:
            o = self.load_ops(it); lops += o; unit_last[it] = o[-1]
        vm = [o for o in lops if o.kind == "vmem"]
        cum = 0; base = None
        for o in vm:
            cum += o.extra["kb"]; o.cum = cum
        base = max(unit_last[("Q", (0, 0))].cum, unit_last[("K", 0)].cum)
        for o in vm: o.est = (o.cum - base) / P["rate"] - P["pro_gaps"]
        W = P["window"]
        needs = sorted((g, unit_last[it].est) for g, it in units if g > -50)
        def stall_at(g):
            return max([e - gg for gg, e in needs if gg <= g] + [0])
        self.stall_at = stall_at
        def to_gap(t):
            if t < 0: return t
            g = 0
            while g + stall_at(g) < t: g += 1
            return g
        for o in vm: o.estg = to_gap(o.est)
        for i, o in enumerate(vm):
            js = [x.estg for x in vm[:i] if x.cum <= o.cum - P["wkb"]]
            o.nb = -10**6 if i < P["window0"] else max([vm[i - W].estg if i >= W else -1, -1] + js[-1:])
        for i, o in enumerate(lops):
            if o.kind == "salu": o.nb = lops[i + 1].nb - 1
        self.late = []
        last = 0
        for g, it in units:
            if g > -50 and stall_at(g) > last + 0.5: self.late.append((it, g, round(stall_at(g) - last))); last = stall_at(g)
        syncs = []; rsync = None
        for g, it in units:
            if it[0] == "Q": continue
            if it[1] in self.refetch:
                if rsync is None: rsync = [g, [], g]; syncs.append(rsync)
                rsync[1].append(it); continue
            est = unit_last[it].estg + P["sync_margin"]
            want = g
            early = max(min(est, want), want - P["sync_early"])
            c = [s for s in syncs if early <= s[0] <= want or (s[0] <= want and want - s[0] <= P["sync_slack"] and est <= s[0])]
            if c: c[-1][1].append(it); continue
            syncs.append([early, [it], want])
        syncs.sort(key=lambda s: s[0])
        for o in lops: self.add(o)
        sops = []
        for g, us, want in syncs:
            rd = [f"dma{k}{p}.{x}" for k, p in us for x in range(2)]
            sops.append(self.add(Op("s_barrier", "sync", rd=rd, wr=[f"vis{k}{p}" for k, p in us], tag="sync" + ",".join(f"{k}{p}" for k, p in us), nb=g)))
        self.lops, self.sops = lops, sops
        self.lset = set(map(id, lops)); sset = set(map(id, sops))
        comp = [o for o in self.ops if id(o) not in self.lset and id(o) not in sset]
        self.comp = comp
        def link(p, c, d): c.preds.append((p, d)); p.succs.append(c)
        pseudo_w = {r: o for o in lops + sops for r in o.wr if r != "m0"}
        lastw, readers = {}, {}
        for o in comp:
            for r in o.rd:
                if r in pseudo_w: link(pseudo_w[r], o, 0)
                elif r in lastw: link(lastw[r], o, hazard_dist(lastw[r], o, "RAW", r))
            for r in o.wr:
                if r in lastw: link(lastw[r], o, hazard_dist(lastw[r], o, "WAW", r))
                for q in readers.get(r, []):
                    if q is not o: link(q, o, hazard_dist(q, o, "WAR", r))
            for r in o.rd: readers.setdefault(r, []).append(o)
            for r in o.wr: lastw[r] = o; readers[r] = []
        for p_, c_ in self.extra_edges: link(p_, c_, 0)
        for T in range(3):
            ps = [o for o in comp if o.tag == f"ps{T}"]
            if T in P["half_order"]:
                for o in self.qreads[T][4:]: link(ps[len(ps) // 2 - 1], o, 0); link(ps[len(ps) // 2 - 6], o, 0)
        prev = None; m0w = None
        for o in lops:
            if prev is not None: link(prev, o, 0)
            if o.kind == "salu": m0w = o
            if "m0" in o.rd: link(m0w, o, 1)
            for w in o.waitfor: link(w, o, 0)
            prev = o
        prev = None
        for o in sops:
            for r in o.rd: link(pseudo_w[r], o, 0)
            if prev is not None: link(prev, o, 0)
            prev = o
        for o in sops:
            if any(int(re.sub(r"[^0-9]", "", r.split(".")[0])) in self.refetch for r in o.rd):
                for st0 in comp:
                    if st0.tag == "ep0s": link(o, st0, 0)
                o.nb = None
        for o in lops:
            if o.kind == "vmem" and o.extra.get("fill") and o.extra["fill"][2] in self.refetch: o.extra["lead"] = P["refetch_lead"]
        for p in range(npos):
            for o in self.kreads[p] + self.vreads[p]:
                o.nb = min(s.gap for s in o.succs if s.kind == "mfma") - P["read_early"]
        for T in (1, 2):
            for i, o in enumerate(self.qreads[T]): o.nb = qneed[T] - (P["q_split"] if i < 4 else 0)
        order = self.toposort()
        for T in range(3):
            eo = [o for o in self.ops if o.tag.startswith(f"ep{T}")]
            g0 = max(m.gap for n, B in enumerate(self.blocks) if B["T"] == T for m in self.pv[n])
            span = P[f"ep{T}_span"]
            for i, o in enumerate(eo): o.due = g0 + 1 + ((span * i) // len(eo) if g0 < NG - 1 else i)
        for o in reversed(order):
            if o.kind == "mfma": o.due = o.gap; continue
            d = o.due
            for s in o.succs:
                if s.kind == "mfma": dd = s.gap - (LEAD if o.kind == "ds" else 1)
                else:
                    dd = s.due
                    if s.kind not in VALU_KINDS and o.kind in VALU_KINDS: dd -= 1
                    if o.kind == "vmem" and id(s) not in self.lset: dd -= o.extra.get("lead", P["vm_lead"])
                    if o.kind == "ds" and s.kind != "ds": dd -= LEAD
                    if o.kind == "salu": dd -= 1
                d = min(d, dd)
            o.due = d
        for o in self.ops:
            if o.due >= 10**8: o.due = NG + 1000 + o.idx
        for o in sops:
            if o.nb is None: o.nb = o.due - 2
        self.emit(order)

    def toposort(self):
        cnt = {id(o): 0 for o in self.ops}
        for o in self.ops:
            for s in o.succs: cnt[id(s)] += 1
        st = [o for o in self.ops if cnt[id(o)] == 0]
        out = []
        while st:
            o = st.pop(); out.append(o)
            for s in o.succs:
                cnt[id(s)] -= 1
                if cnt[id(s)] == 0: st.append(s)
        assert len(out) == len(self.ops), "dependency cycle"
        return out

    def emit(self, order):
        P = self.P
        lin = []; vmq = []; dsq = []; done = set()
        st = dict(nops=0, slot=0)
        slot_readers = {}
        for o in self.ops:
            if o.kind == "ds" and "lds" in o.extra:
                slot_readers.setdefault((o.extra["lds"][0], o.extra["lds"][2]), []).append(o)
        released = set()
        def put(text, op=None):
            lin.append((text, op))
            if op is not None: op.pos = st["slot"]
            st["slot"] += (int(text.split()[1]) + 1) if text.startswith("s_nop") else (0 if text.startswith(";") else 1)
            if op is not None:
                for x in op.succs: x.nunp -= 1
        def need_wait(o):
            vm = lg = None
            rd = set(o.rd)
            for p, _ in o.preds:
                if id(p) in done: continue
                if p.kind == "vmem" and (set(p.wr) & rd):
                    k = len(vmq) - 1 - vmq.index(p); vm = k if vm is None else min(vm, k)
                if p.kind == "ds" and ((set(p.wr) & rd) or p in o.waitfor):
                    k = len(dsq) - 1 - dsq.index(p); lg = k if lg is None else min(lg, k)
            return vm, lg
        def do_wait(vm, lg):
            if vm is None and lg is None: return False
            t = "s_waitcnt"
            if vm is not None:
                t += f" vmcnt({vm})"
                while len(vmq) > vm: done.add(id(vmq.pop(0)))
            if lg is not None:
                lg = min(lg, 15); t += f" lgkmcnt({lg})"
                while len(dsq) > lg: done.add(id(dsq.pop(0)))
            put(t); return True
        def dist_short(o):
            n = st["slot"]
            return max([d - (n - p.pos - 1) for p, d in o.preds] + [0])
        def place(o):
            c = 0
            vm_, lg_ = need_wait(o)
            if vm_ is not None and id(o) not in self.lset:
                X = vmq[len(vmq) - 1 - vm_]
                gg = max(o.gap, 0)
                if hasattr(X, "estg") and (X.estg >= gg - 1 or o.gap < 0):
                    while vm_ < P["window"] - 1:
                        nx = next((x for x in self.lops if x.pos is None), None)
                        if nx is not None and (nx if nx.kind == "vmem" else nx.succs[0]).cum > X.cum + P["wkb"]: break
                        if nx is None or not ready(nx, o.gap, False) or any(id(w) not in done for w in nx.waitfor): break
                        nx.gap = o.gap; pending.remove(nx); c += place(nx)
                        if nx.kind == "vmem": vm_ += 1
            c += 4 if do_wait(*need_wait(o)) else 0
            k = dist_short(o)
            if k > 0: put(f"s_nop {k-1}"); c += 4 * k; st["nops"] += k
            put(o.text, o)
            if o.kind in ("vmem", "store"): vmq.append(o); assert len(vmq) <= 63
            if o.kind in ("ds", "dsw"): dsq.append(o)
            if o.kind == "sync":
                for key, rs in slot_readers.items():
                    if all(id(r) in done for r in rs): released.add(key)
            return c + o.cost
        for o in self.ops: o.nunp = 0
        for o in self.ops:
            for x in o.succs: x.nunp += 1
        stampgaps = {}
        if P["stamps"] == 1:
            for i, n in enumerate(P["stamp_groups"]): stampgaps[self.fgg[n]] = 3 + i
        pending = sorted([o for o in order if o.kind != "mfma"], key=lambda o: (o.due, o.idx))
        def ready(o, g, strict):
            if o.nunp: return False
            if strict and o.kind not in VALU_KINDS:
                for p, d in o.preds:
                    if p.kind in VALU_KINDS and p.gap == g: return False
            gd = o.extra.get("guard")
            if gd and gd[3] is not None and (gd[0], gd[3]) not in released: return False
            if o.kind in ("vmem", "store") and len(vmq) >= 62: return False
            return True
        def force(o, g):
            c = 0
            if o.pos is not None: return 0
            for p, _ in sorted(o.preds, key=lambda t: t[0].idx):
                if p.pos is None:
                    assert p.kind != "mfma", f"backbone order violates deps: {o.tag} needs {p.tag}"
                    c += force(p, g)
            if o.kind != "mfma":
                gd = o.extra.get("guard")
                if gd and gd[3] is not None and (gd[0], gd[3]) not in released:
                    rs = slot_readers[(gd[0], gd[3])]
                    assert all(r.pos is not None for r in rs), f"refill {o.tag} before its slot was read"
                    x = Op("s_barrier", "sync", tag="release"); x.nunp = 0; x.idx = -1; x.gap = g
                    x.preds = [(r, 0) for r in rs]; x.waitfor = rs
                    c += place(x)
                assert ready(o, g, False), f"cannot force {o.tag} at gap {g}"
                o.gap = g; pending.remove(o); c += place(o)
            return c
        g = -1
        for o in list(self.lops):
            if o.nb > -10**5 or not ready(o, g, False): break
            o.gap = g; pending.remove(o); place(o)
        put("; ---- prologue loads issued")
        pro = [o for o in pending if o.tag in ("qr0", "ps0")]
        pro.sort(key=lambda o: o.idx)
        pro = pro[:len(pro) // 2]
        k0 = [o for o in self.sops[:1]] + self.kreads[0]
        for i, o in enumerate(pro):
            force(o, g)
            if i == 3:
                for x in k0: force(x, g)
            if i > 8 and i % 6 == 0:
                nx = next((x for x in self.lops if x.pos is None), None)
                if nx is not None and len(vmq) < P["window_pro"] and sum(x.extra["kb"] for x in vmq) + 4 <= P["wkb"] + 8 and ready(nx, g, False) and all(id(w) in done for w in nx.waitfor):
                    force(nx, g)
                    if nx.kind == "salu": force(nx.succs[0], g)
        total = 0; self.gapcost = []; self.gaplog = []
        for g, m in enumerate(self.bb):
            c = force(m, g - 1)
            if do_wait(*need_wait(m)): c += 4
            k = dist_short(m)
            if k > 0: put(f"s_nop {k-1}"); c += 4 * k; st["nops"] += k
            if g > 0: self.gapcost[-1] = max(32, self.gapraw + c)
            if g in stampgaps: put(f"STAMP {stampgaps[g]}")
            put(m.text, m)
            used = 0; free_salu = True; log = []
            if g + 1 < len(self.bb):
                nx = self.bb[g + 1]
                if all(p.pos is not None for p, _ in nx.preds if p.kind == "ds"):
                    if do_wait(*need_wait(nx)): free_salu = False
            cap = P["cap"]
            if P["cap_soft"] < cap:
                need = 0; acc = 0; H = {}
                for o in pending:
                    if o.due > g + 170: break
                    acc += o.cost if o.kind not in ("salu", "br") else 0
                    need = max(need, acc / (max(o.due - g, 0) + 1))
                cap = min(cap, max(P["cap_soft"], 4 * math.ceil(need * P["cap_margin"] / 4)))
            for phase, nopok in ((0, False), (1, False), (1, True)):
                progress = True
                while progress:
                    progress = False
                    resv = sum(x.cost for x in pending[:60] if x.kind in VALU_KINDS and x.due <= g) if phase == 0 else 0
                    for o in pending:
                        if o.nunp: continue
                        isv = o.kind in VALU_KINDS
                        if isv != (phase == 1): continue
                        must = o.due <= g
                        if o.kind == "store" and g - st.get("store", -99) < P["store_gap"]: continue
                        if o.kind == "dsw" and g - st.get("dsw", -99) < P["dsw_gap"]: continue
                        if o.nb is not None and g < o.nb and not must and not (id(o) in self.lset and len(vmq) < P["window"] - 1 and sum(x.extra.get("kb", 4) for x in vmq) + 4 <= P["wkb"]): continue
                        if not ready(o, g, True):
                            gd = o.extra.get("guard")
                            if o.kind == "salu" and gd and (must or (gd[2] > 15 and used <= 8)) and all(r.pos is not None and (must or r.gap < g - 4) for r in slot_readers[(gd[0], gd[3])]):
                                used += force(o, g); log.append("rel+" + o.tag); progress = True; break
                            continue
                        cost = o.cost
                        if o.kind in ("salu", "br") and free_salu: cost = 0
                        if not must:
                            if used + cost + resv > max(cap, cost if used == 0 else 0): continue
                            if o.kind in ("vmem", "store", "dsw") and used > 4: continue
                            if o.kind == "ds" and used >= P["ds_per_gap"] * 4 and o.due > g + 2: continue
                            ds_ = dist_short(o)
                            if ds_ > 0 and (phase == 0 or not nopok or used + cost + 4 * ds_ > cap): continue
                            if o.kind != "sync" and o.tag[:2] != "qr":
                                w = need_wait(o)
                                if w[1] is not None and any(p.kind == "ds" and id(p) not in done and p.gap > g - P["lead"] and (set(p.wr) & set(o.rd) or p in o.waitfor) for p, _ in o.preds): continue
                        o.gap = g; pending.remove(o)
                        st[o.kind] = g
                        cc = place(o)
                        if o.kind in ("salu", "br") and free_salu: cc -= 4
                        if not isv: free_salu = False
                        used += cc; log.append(o.tag)
                        progress = True
                        break
            if cap - used >= 4:
                blocked = [dist_short(o) for o in pending[:400] if o.kind in VALU_KINDS and not o.nunp and (o.nb is None or g + 1 >= o.nb)]
                blocked = [b_ - 1 for b_ in blocked if b_ > 1]
                if blocked:
                    k = min(min(blocked), (cap - used) // 4)
                    put(f"s_nop {k-1}"); used += 4 * k; log.append(f"nop{k}")
            self.gapraw = 8 + used
            self.gapcost.append(max(32, self.gapraw)); self.gaplog.append((m.tag, used, log))
        if P["stamps"]: put(f"STAMP {3+len(P['stamp_groups'])}")
        tail = 0
        tiss = {}
        pending.sort(key=lambda o: (0 if o.tag.startswith("ep1") else 1, o.idx) if P["tail_order"] else (o.due, o.idx))
        while pending:
            g = len(self.bb) + tail // 32
            pick = None
            for kinds in (("store", "ds", "dsw"), VALU_KINDS):
                for o in pending:
                    if o.nunp or o.kind not in kinds or dist_short(o) > 0: continue
                    if o.kind == "store" and tail - tiss.get("store", -999) < P["tail_store_gap"]: continue
                    if any(p.kind == "ds" and id(p) not in done and tail - tiss.get(id(p), -999) < P["tail_lds"] and (set(p.wr) & set(o.rd)) for p, _ in o.preds): continue
                    pick = o; break
                if pick: break
            if pick is None: pick = next(o for o in pending if not o.nunp)
            tiss[id(pick)] = tail; tiss[pick.kind] = tail
            tail += force(pick, g)
        self.lin = lin
        self.stats = dict(backbone=sum(self.gapcost), tail=tail, nops=st["nops"], n=len(lin))

    def verify(self):
        lw = {}; want = {}
        trk = lambda r: isreg(r) or r in ("vcc", "stg0", "stg1")
        for o in self.comp:
            want[id(o)] = {r: lw.get(r) for r in o.rd if trk(r)}
            for r in o.wr: lw[r] = o
        lw = {}; rdrs = {}; slot = 0; vm, lg = [], []; done = set()
        vis = {}; inflight = {}; reads_since = {}; posn = {}
        for t, o in self.lin:
            if o is None:
                m = re.match(r"s_nop (\d+)", t)
                if m: slot += int(m.group(1)) + 1; continue
                if t.startswith("STAMP"): slot += 1; continue
                if t.startswith("s_waitcnt"):
                    m = re.search(r"vmcnt\((\d+)\)", t)
                    if m:
                        while len(vm) > int(m.group(1)): done.add(id(vm.pop(0)))
                    m = re.search(r"lgkmcnt\((\d+)\)", t)
                    if m:
                        while len(lg) > int(m.group(1)): done.add(id(lg.pop(0)))
                    slot += 1
                continue
            posn[id(o)] = slot
            for w in o.waitfor: assert id(w) in done, f"{o.tag} issued before {w.tag} completed"
            for r in o.rd:
                p = lw.get(r)
                if trk(r):
                    assert want[id(o)][r] is p, f"value flow broken: {o.tag} reads {r}"
                    if p is not None:
                        assert slot - posn[id(p)] - 1 >= hazard_dist(p, o, "RAW", r), f"RAW hazard {p.tag}->{o.tag} on {r}"
                        if p.kind == "ds" and o.kind != "br": assert id(p) in done, f"{o.tag} reads {r} before {p.tag} completed"
                if r == "m0": assert slot - posn[id(p)] - 1 >= 1
                if r.startswith("ldQ") or r.startswith("dma"): assert id(p) in done, f"{o.tag} before {p.tag} landed"
            for r in o.wr:
                if trk(r):
                    p = lw.get(r)
                    if p is not None:
                        assert slot - posn[id(p)] - 1 >= hazard_dist(p, o, "WAW", r), f"WAW {p.tag}->{o.tag}"
                        if p.kind == "ds": assert id(p) in done, f"{o.tag} overwrites {r} while {p.tag} in flight"
                    for q in rdrs.get(r, []):
                        if q is not o: assert slot - posn[id(q)] - 1 >= hazard_dist(q, o, "WAR", r), f"WAR {q.tag}->{o.tag}"
            for r in o.rd: rdrs.setdefault(r, []).append(o)
            for r in o.wr: lw[r] = o; rdrs[r] = []
            if o.kind in ("vmem", "store"): vm.append(o); assert len(vm) <= 63
            if o.kind in ("ds", "dsw"): lg.append(o)
            if o.kind == "vmem" and o.extra.get("fill"):
                k, sl, p, prev = o.extra["fill"]
                assert not reads_since.get((k, sl)), f"{o.tag} refills slot with uncovered readers"
                vis.pop((k, sl), None)
                inflight.setdefault((k, sl), {}).setdefault(p, []).append(o)
            if o.kind == "sync":
                for key, d in inflight.items():
                    for p, l in list(d.items()):
                        if len(l) == 2 and all(id(x) in done for x in l): vis[key] = self.pos[p][0]; del d[p]
                for key in list(reads_since): reads_since[key] = [x for x in reads_since[key] if id(x) not in done]
            if o.kind == "ds" and "lds" in o.extra:
                k, sl, p = o.extra["lds"]
                assert vis.get((k, sl)) == self.pos[p][0], f"{o.tag} reads slot not visible / wrong tile"
                reads_since.setdefault((k, sl), []).append(o)
            slot += 1
        assert all(o.pos is not None for o in self.ops)

    def handler(self, key):
        T, par, same_next = key
        S = V_S + 16 * par; S2 = V_S + 16 * (par ^ 1); Pp = V_P + 8 * par; LB = V_LB + par
        NM = V_NEGM + 16 * T; O = A_O + 64 * T; H = V_H + 3
        L = [f"L_h{T}{par}{int(same_next)}:", "s_nop 15", "s_nop 15"]
        L.append(f"v_max3_f32 v{H}, v{S}, v{S+1}, 0")
        for r in range(2, 16, 2): L.append(f"v_max3_f32 v{H}, v{H}, v{S+r}, v{S+r+1}")
        L += [f"v_mov_b32 v{H+1}, v{H}", "s_nop 1", f"v_permlane32_swap_b32 v{H}, v{H+1}", "s_nop 1", f"v_max_f32 v{H}, v{H}, v{H+1}",
              f"v_sub_f32 v{H+1}, 0, v{H}", f"v_exp_f32 v{H+1}, v{H+1}"]
        for r in range(16): L.append(f"v_sub_f32 v{NM+r}, v{NM+r}, v{H}")
        for r in range(16): L.append(f"v_sub_f32 v{S+r}, v{S+r}, v{H}")
        if same_next:
            for r in range(16): L.append(f"v_sub_f32 v{S2+r}, v{S2+r}, v{H}")
        L.append(f"v_mul_f32 v{V_L+T}, v{V_L+T}, v{H+1}")
        for r in range(64):
            L += [f"v_accvgpr_read_b32 v{H+2}, a{O+r}", f"v_mul_f32 v{H+2}, v{H+2}, v{H+1}", f"v_accvgpr_write_b32 a{O+r}, v{H+2}"]
        L.append(f"v_mov_b32 v{LB}, 0")
        for k in range(8):
            L += [f"v_exp_f32 v{H}, v{S+2*k}", f"v_exp_f32 v{H+2}, v{S+2*k+1}", "s_nop 0", f"v_add_f32 v{LB}, v{LB}, v{H}",
                  f"v_add_f32 v{LB}, v{LB}, v{H+2}", f"v_cvt_pk_bf16_f32 v{Pp+k}, v{H}, v{H+2}"]
        L += ["s_nop 3", f"s_setpc_b64 s[{S_LINK}:{S_LINK+1}]"]
        return L

    def pf_text(self):
        P = self.P
        if P["npf"]: return f"s_getpc_b64 s[{S_PC}:{S_PC+1}]\nv_lshlrev_b32 v{V_PF+1}, 7, v0"
        if not P["pf_first"]: return ""
        if P["pf_first"] == 1:
            return f"""s_getpc_b64 s[{S_PC}:{S_PC+1}]
v_lshlrev_b32 v{V_PF+1}, 7, v0
global_load_dword v{V_PF}, v{V_PF+1}, s[{S_PC}:{S_PC+1}]"""
        d = P["pf_div"]; n = 64 // d; lg = int(math.log2(n))
        return f"""s_getpc_b64 s[{S_PC}:{S_PC+1}]
s_lshr_b32 s3, s2, 3
s_and_b32 s3, s3, {d-1}
s_lshl_b32 s3, s3, {15-int(math.log2(d))}
v_and_b32 v{V_PF+1}, {n-1}, v0
v_lshrrev_b32 v{V_PF+2}, 6, v0
v_lshl_add_u32 v{V_PF+1}, v{V_PF+2}, {lg}, v{V_PF+1}
v_lshl_add_u32 v{V_PF+1}, v{V_PF+1}, 7, s3
s_mov_b64 exec, {(1<<n)-1:#x}
global_load_dword v{V_PF}, v{V_PF+1}, s[{S_PC}:{S_PC+1}]
s_mov_b64 exec, -1"""

    def text(self):
        P = self.P
        c = math.log2(math.e) / math.sqrt(128.0)
        H = []; A = H.append
        X = V_X
        ts = lambda i: f"{'s_memtime' if P['stamps_cyc'] else 's_memrealtime'} s[{S_TS+2*i}:{S_TS+2*i+1}]" if P["stamps"] else ""
        A(f"; @launch grid=(256,1,1) block=(256,1,1) lds=163840")
        A('.amdgcn_target "amdgcn-amd-amdhsa--gfx950"')
        A(".text"); A(f".globl {KNAME}"); A(".p2align 12"); A(".p2align 8"); A(f".type {KNAME},@function"); A(f"{KNAME}:")
        pro = f"""
s_load_dwordx8 s[4:11], s[0:1], 0
s_cmp_ge_u32 s2, 256
s_cbranch_scc1 L_end
{ts(0)}
{self.pf_text()}
{"s_memtime s[60:61]" if P["stamps"] else ""}
v_lshrrev_b32 v{X}, 6, v0                   ; wave
v_and_b32 v{V_LANE}, 63, v0                 ; lane
s_and_b32 s3, s2, 7
v_readfirstlane_b32 s{S_WOFF}, v{X}
s_lshr_b32 s2, s2, 3
s_lshl_b32 s3, s3, 5
s_add_u32 s2, s2, s3
s_lshr_b32 s3, s2, 2
s_mul_i32 s{S_LINK}, s2, 98304
s_lshl_b32 s{S_LINK+1}, s3, 17
v_and_b32 v{X+3}, 15, v{V_LANE}             ; l%16
v_lshrrev_b32 v{X+4}, 4, v{V_LANE}          ; G = l/16
; q/o offsets x: (32w + 8x + l/8)*256 + ((l%8) ^ (G + 4(x%2)) ^ 4*(row&1))*16 - 1024x
v_lshrrev_b32 v{X+6}, 3, v{V_LANE}
v_lshl_add_u32 v{X+5}, v{X}, 5, v{X+6}
v_lshlrev_b32 v{X+8}, 8, v{X+5}
v_and_b32 v{X+7}, 7, v{V_LANE}
v_xor_b32 v{X+7}, v{X+4}, v{X+7}
v_and_b32 v{X+6}, 1, v{X+6}
v_lshlrev_b32 v{X+6}, 2, v{X+6}
v_xor_b32 v{X+7}, v{X+6}, v{X+7}
v_lshl_add_u32 v{V_QOFF}, v{X+7}, 4, v{X+8}
v_xor_b32 v{V_QOFF+1}, 64, v{V_QOFF}
v_add_u32 v{V_QOFF+2}, 0x800, v{V_QOFF}
v_add_u32 v{V_QOFF+1}, 0x400, v{V_QOFF+1}
v_add_u32 v{V_QOFF+3}, 0x800, v{V_QOFF+1}
; K dma offsets: row0 = 8w + G ; x: row0*256 + ((l%16)^((row0+4x)&15))*16
v_lshl_add_u32 v{X+5}, v{X}, 3, v{X+4}
v_and_b32 v{X+6}, 15, v{X+5}
v_xor_b32 v{X+7}, v{X+6}, v{X+3}
v_lshlrev_b32 v{X+8}, 8, v{X+5}
v_lshl_add_u32 v{V_DMAK}, v{X+7}, 4, v{X+8}
v_xor_b32 v{X+7}, 4, v{X+7}
v_lshl_add_u32 v{V_DMAK+1}, v{X+7}, 4, v{X+8}
s_lshl_b32 s{S_SW}, s{S_WOFF}, 13
s_add_u32 s{S_SW}, s{S_SW}, {STG}
s_lshl_b32 s{S_WOFF}, s{S_WOFF}, 11
s_mov_b32 s{S_T}, 0
s_movk_i32 s{S_T+1}, 128
s_mov_b32 s{S_J}, 0
s_mov_b32 s{S_SRDQ+2}, 98304
s_mov_b32 s{S_SRDQ+3}, 0x00020000
s_mov_b32 s{S_SRDK+2}, 131072
s_mov_b32 s{S_SRDK+3}, 0x00020000
s_waitcnt lgkmcnt(0)
{ts(1)}
s_add_u32 s{S_SRDK}, s6, s{S_LINK+1}
s_addc_u32 s{S_SRDK+1}, s7, 0
s_add_u32 s{S_SRDQ}, s4, s{S_LINK}
s_addc_u32 s{S_SRDQ+1}, s5, 0
"""
        pro2 = f"""
; V dma offset: row0*256 + ((l%16) ^ (G<<2))*16
v_lshlrev_b32 v{X+7}, 2, v{X+4}
v_xor_b32 v{X+7}, v{X+7}, v{X+3}
v_lshl_add_u32 v{V_DMAV}, v{X+7}, 4, v{X+8}
s_add_u32 s{S_SRDV}, s8, s{S_LINK+1}
s_addc_u32 s{S_SRDV+1}, s9, 0
s_mov_b32 s{S_SRDV+2}, 131072
s_mov_b32 s{S_SRDV+3}, 0x00020000
s_add_u32 s{S_SRDO}, s10, s{S_LINK}
s_addc_u32 s{S_SRDO+1}, s11, 0
s_mov_b32 s{S_SRDO+2}, 98304
s_mov_b32 s{S_SRDO+3}, 0x00020000
s_mov_b32 s{S_THR}, 0x{f32bits(2.0**40):08x}
s_mov_b32 s{S_C}, 0x{f32bits(c):08x}
s_mov_b32 s{S_MASK}, 0xffff0000
"""
        for t in range(2, 6): pro2 += f"s_mov_b32 s{S_T+t}, {32768*(t//2)+128*(t%2)}\n"
        for j in range(1, 16): pro2 += f"s_mov_b32 s{S_J+j}, {j*8192}\n"
        addr = f"""
{ts(2)}
{pro2}
v_and_b32 v{X+1}, 31, v{V_LANE}             ; l%32
v_lshrrev_b32 v{X+2}, 5, v{V_LANE}          ; h
v_lshlrev_b32 v{X+8}, 8, v{X+1}
v_xor_b32 v{X+7}, v{X+2}, v{X+3}
v_lshl_add_u32 v{V_KADDR}, v{X+7}, 4, v{X+8}
"""
        for s in range(1, 8): addr += f"v_xor_b32 v{V_KADDR+s}, {32*s}, v{V_KADDR}\n"
        addr += f"""; staging fragment addresses: q*128 + ((2s+h) ^ ((q>>1)&7) ^ 4*(q&1))*16 + base
v_bfe_u32 v{X+7}, v{V_LANE}, 1, 3
v_xor_b32 v{X+7}, v{X+2}, v{X+7}
v_and_b32 v{X+8}, 1, v{V_LANE}
v_lshlrev_b32 v{X+8}, 2, v{X+8}
v_xor_b32 v{X+7}, v{X+8}, v{X+7}
v_lshlrev_b32 v{X+8}, 7, v{X+1}
v_lshl_add_u32 v{X+8}, v{X+7}, 4, v{X+8}
v_add_u32 v{V_QADDR}, s{S_SW}, v{X+8}
"""
        for s in range(1, 4): addr += f"v_xor_b32 v{V_QADDR+s}, {32*s}, v{V_QADDR}\n"
        addr += f"""
v_lshl_add_u32 v{V_QADDR+7}, v{X}, 5, v{X+1}
v_lshlrev_b32 v{V_QADDR+7}, 8, v{V_QADDR+7}
v_lshl_add_u32 v{V_QADDR+7}, v{X+2}, 4, v{V_QADDR+7}
v_lshlrev_b32 v{V_SLIN}, 4, v{V_LANE}
v_add_u32 v{V_SLIN}, s{S_SW}, v{V_SLIN}
; V fragment addresses: VREG + (4h+r)*256 + (db^r)*64 + 32(G%2) + 16(c%2) + 8(c/2);  r=(l%16)/4, c=l%4
v_lshrrev_b32 v{X+5}, 2, v{X+3}             ; r
v_lshl_add_u32 v{X+6}, v{X+2}, 2, v{X+5}    ; 4h + r
v_lshlrev_b32 v{X+6}, 8, v{X+6}
v_and_b32 v{X+7}, 1, v{X+4}
v_lshl_add_u32 v{X+6}, v{X+7}, 5, v{X+6}
v_and_b32 v{X+7}, 1, v{V_LANE}
v_lshl_add_u32 v{X+6}, v{X+7}, 4, v{X+6}
v_bfe_u32 v{X+7}, v{V_LANE}, 1, 1
v_lshl_add_u32 v{X+6}, v{X+7}, 3, v{X+6}
v_add_u32 v{X+6}, {VREG}, v{X+6}
v_lshl_add_u32 v{V_VADDR}, v{X+5}, 6, v{X+6}
v_xor_b32 v{V_VADDR+1}, 64, v{V_VADDR}
v_xor_b32 v{V_VADDR+2}, 0x80, v{V_VADDR}
v_xor_b32 v{V_VADDR+3}, 0xc0, v{V_VADDR}
"""
        def block(txt):
            for l in txt.strip().split("\n"):
                if l.strip(): A("    " + l)
        block(pro)
        for t, o in self.lin:
            if t.startswith("STAMP"): A("    " + ts(int(t.split()[1]))); continue
            if t.startswith("; ---- prologue loads issued"): block(addr); A("    ; WALK"); continue
            for l in t.split("\n"):
                if l.endswith(":"): A(l)
                else: A("    " + l + (f"    ; {o.tag}" if (o is not None and P["comments"]) else ""))
        if P["stamps"]:
            ns = 3 + len(P["stamp_groups"]) + 1
            dst = 32 if P["stamps_dbg"] else 40
            block(f"""{ts(ns)}
s_waitcnt vmcnt(0)
{ts(ns+1)}
s_memtime s[4:5]
s_load_dwordx2 s[6:7], s[0:1], {dst}
s_waitcnt lgkmcnt(0)
s_sub_u32 s4, s4, s60
s_mov_b32 s8, s6
s_mov_b32 s9, s7
s_mov_b32 s10, {64 if P["stamps_dbg"] else 0x100000}
s_mov_b32 s11, 0x00020000
s_lshl_b32 s3, s2, 9
s_lshr_b32 s5, s{S_WOFF}, 4
s_add_u32 s3, s3, s5""")
            if P["stamps_dbg"]: block(f"s_sub_u32 s3, s3, {P['stamps_dbg']*512}")
            sel = list(range(ns + 2))
            if P["stamps_dbg"]: sel = [1, 2, 3, 4, 6, 8, 10, 11, 12, 13, 14, 15, 16, 17, 18, 19]
            for k, i in enumerate(sel):
                if P["stamps_dbg"]: block(f"s_sub_u32 s5, s{S_TS+2*i}, s{S_TS}\nv_mov_b32 v1, s5")
                else: block(f"v_mov_b32 v1, s{S_TS+2*i}")
                block(f"v_mov_b32 v2, s3\nbuffer_store_dword v1, v2, s[8:11], 0 offen offset:{4*k}")
            if not P["stamps_dbg"]: block(f"v_mov_b32 v1, s4\nv_mov_b32 v2, s3\nbuffer_store_dword v1, v2, s[8:11], 0 offen offset:124")
        A("L_end:"); A("    s_endpgm")
        for n, key in self.tramps:
            A(f"L_tr{n}:")
            A(f"    s_call_b64 s[{S_LINK}:{S_LINK+1}], L_h{key[0]}{key[1]}{int(key[2])}")
            A(f"    s_branch L_bk{n}")
        for key in sorted(self.handlers):
            for l in self.handler(key): A(l if l.endswith(":") else "    " + l)
        A("    s_endpgm")
        A('.section .rodata,"a"'); A(".p2align 6"); A(f".amdhsa_kernel {KNAME}")
        A("  .amdhsa_next_free_vgpr 512"); A(f"  .amdhsa_next_free_sgpr {102 if P['stamps'] else 64}"); A("  .amdhsa_accum_offset 256")
        A("  .amdhsa_group_segment_fixed_size 0"); A("  .amdhsa_kernarg_size 48"); A("  .amdhsa_user_sgpr_count 2")
        A("  .amdhsa_user_sgpr_kernarg_segment_ptr 1"); A("  .amdhsa_system_sgpr_workgroup_id_x 1"); A(".end_amdhsa_kernel")
        return "\n".join(H) + "\n"

DEFAULT = dict(a=2, b=8, keep=5, unpair=0, drain=1, direct=(), dflag=" nt", mids=(), q_first=0, ep0_span=60, ep1_span=40, ep2_span=0, pattern="QQPQQPQQPQQPPPPP", lead=4, read_early=14, sync_slack=40, sync_early=12, sync_margin=8, vm_lead=6, refetch_lead=50, refetch_once=1, half_order=(0, 1),
               ps1_early=-2, ps2_early=80, q_bias=0, q_split=20, pf_at=4, npf=0, pf_first=2, pf_div=4, rate=0.33, pro_gaps=12, window=12, wkb=20, window0=10, kv_before_q1=4, window_pro=14, kv_kb=1.0, cap=24, cap_soft=20, cap_margin=1.2, ds_per_gap=2, store_gap=3, tail_order=1, tail_store_gap=40, tail_lds=100, dsw_gap=2,
               stflag=" nt", qflag=" nt", kvflag=" nt", comments=True, pk_from0=8, pk_from1=8, pk_from2=2, stub_offs=(0,), stamps=0, stamps_cyc=0, stamps_dbg=0,
               stamp_groups=(-1, 0, 1, 3, 5, 6, 9, 12, 18, 24, 33, 39, 45, 48))

def generate(**kw):
    P = dict(DEFAULT); P.update(kw)
    g = Gen(P); g.build(); g.schedule(); g.verify()
    return g

def insn_sizes(lines):
    import subprocess, tempfile, os
    marked = []
    for i, l in enumerate(lines):
        marked.append(f"Lm_{i}:"); marked.append(l)
    end = next(i for i, l in enumerate(lines) if l.startswith("L_end:"))
    src = "\n".join(marked[:2 * end]) + f"\nLm_{end}:\nL_end:\n" + "\n".join(lines[end + 1:]) + "\n"
    d = tempfile.mkdtemp()
    open(d + "/a.s", "w").write(src)
    r = subprocess.run(["clang", "-x", "assembler", "-target", "amdgcn-amd-amdhsa", "-mcpu=gfx950", "-c", d + "/a.s", "-o", d + "/a.o"],
                       capture_output=True, text=True)
    assert r.returncode == 0, r.stderr[:2000]
    o = subprocess.run(["llvm-objdump", "-t", d + "/a.o"], capture_output=True, text=True).stdout
    addr = {}
    for l in o.splitlines():
        f = l.split()
        if f and f[-1].startswith("Lm_"): addr[int(f[-1][3:])] = int(f[0], 16)
    return addr, end

def add_stubs(text, P):
    lines = text.split("\n")
    w = next(i for i, l in enumerate(lines) if l.strip() == "; WALK")
    nst = 8 * len(P["stub_offs"])
    walk = [f"    s_lshr_b32 s3, s{S_WOFF}, 11"]
    for k in range(4): walk += [f"    s_cmp_eq_u32 s3, {k}", f"    s_cbranch_scc1 L_stub{k}_0"]
    walk += ["L_walk_done:", "    s_cmp_eq_u32 s3, 99"]
    probe = lines[:w] + [l.replace("L_stub%d_0" % k, "L_walk_done") if "L_stub" in l else l for l in walk for k in [int(re.search(r"L_stub(\d)", l).group(1)) if "L_stub" in l else 0]] + lines[w + 1:]
    addr, end = insn_sizes(probe)
    start = next(i for i, l in enumerate(probe) if l.startswith(KNAME + ":"))
    base = addr[start + 1]
    first = w + len(walk)
    tg = sorted(4096 * p + o for p in range(1, 9) for o in P["stub_offs"])
    ins = []
    shift = 0; ti = 0
    for i in range(first, end):
        while ti < len(tg) and addr[i] - base + shift >= tg[ti]:
            if probe[i].endswith(":") or probe[i].strip().startswith(";"): break
            ins.append(i); shift += 4; ti += 1
    n = len(ins)
    per = (n + 3) // 4
    chains = [list(range(k * per, min(n, (k + 1) * per))) for k in range(4)]
    out = list(probe)
    name = {}
    for k, ch in enumerate(chains):
        for j, x in enumerate(ch): name[x] = (f"L_stub{k}_{j}", f"L_stub{k}_{j+1}" if j + 1 < len(ch) else "L_walk_done")
    for x in reversed(range(n)):
        out[ins[x]:ins[x]] = [name[x][0] + ":", f"    s_cbranch_scc1 {name[x][1]}"]
    wl = [l if not ("L_stub" in l and not chains[int(re.search(r"L_stub(\d)", l).group(1))]) else l.replace(l.split()[-1], "L_walk_done") for l in walk]
    out[w:w + len(walk)] = wl
    return "\n".join(out), addr[end] - base + shift

def write(out, **kw):
    g = generate(**kw)
    hdr = open("standalone__gqa_softmax__near_ridge.s.ref").read().split("\n")
    hdr = [l for l in hdr if l.startswith("; Kernarg") or l.startswith(";   offset")]
    t = g.text()
    if g.P["stub_offs"]:
        t, g.stats["bytes"] = add_stubs(t, g.P)
    open(out, "w").write("\n".join(hdr) + "\n" + t)
    return g

if __name__ == "__main__":
    kw = {}; out = "k.s"; verbose = 0
    for a in sys.argv[1:]:
        k, v = a.split("=", 1)
        if k == "out": out = v; continue
        if k == "v": verbose = int(v); continue
        if k in ("stamp_groups", "half_order", "stub_offs", "mids", "direct"): kw[k] = tuple(int(x) for x in v.split(",") if x); continue
        try: v = int(v)
        except ValueError:
            try: v = float(v)
            except ValueError: v = v.replace("_", " ") if k.endswith("flag") else v
        kw[k] = v
    g = write(out, **kw)
    print(g.stats, "late:", g.late)
    ks = sorted(g.fgg)
    print("group costs:", [sum(g.gapcost[g.fgg[n]:(g.fgg[n+1] if n + 1 in g.fgg else None)]) for n in ks])
    if verbose:
        print(g.seq)
        for i, (t, u, l) in enumerate(g.gaplog): print(i, t, g.gapcost[i], " ".join(l))
```

```python
import sys, json, itertools
import gen
base = dict(comments=0, stamps=1,
            stamp_groups=(-1, 0, 2, 4, 6, 8, 10, 12, 14, 20, 30, 38, 42, 46))
cfgs = json.load(open(sys.argv[1]))
files = []
for i, c in enumerate(cfgs):
    kw = dict(base); kw.update(c)
    for k in ("half_order", "stub_offs", "mids", "direct"):
        if k in kw: kw[k] = tuple(kw[k])
    try:
        g = gen.write(f"w{i}.s", **kw)
        print(i, c, g.stats["backbone"], g.stats["tail"], g.stats.get("bytes"))
        files.append(f"work/w{i}.s")
    except Exception as e:
        print(i, c, "FAILED", repr(e)[:100])
print(json.dumps(files))
```

```python
import sys, math, struct, re

KNAME = "standalone__gqa_softmax__near_ridge_kernel"
def f32bits(x): return struct.unpack("<I", struct.pack("<f", x))[0]

V_LANE = 0
V_KADDR = 1
V_VADDR = 9
V_DMAK = 13
V_DMAV = 15
V_SLIN = 16
V_L = 17
V_LB = 20
V_H = 22
V_E = 28
V_PT = 36
V_S = 40
V_P = 72
V_NEGM = 88
V_Q = 136
V_QADDR = 232
V_QOFF = 240
V_PF = 244
V_X = 247
A_O = 0
A_K = 192
A_V = 224

S_SRDQ, S_SRDK, S_SRDV, S_SRDO = 12, 16, 20, 24
S_WOFF, S_THR, S_LINK, S_PC, S_C, S_MASK = 28, 29, 30, 32, 34, 35
S_T = 36
S_SW = 42
S_J = 44
S_TS = 62

KREG, VREG, STG = 0, 65536, 131072
NSLOT = 8

def vr(b, n=1): return [f"v{b+i}" for i in range(n)]
def ar(b, n=1): return [f"a{b+i}" for i in range(n)]
def vt(b, n): return f"v[{b}:{b+n-1}]" if n > 1 else f"v{b}"
def at(b, n): return f"a[{b}:{b+n-1}]" if n > 1 else f"a{b}"
def isreg(r): return r[0] in "va" and r[1:].isdigit()

COST = {"valu": 4, "trans": 8, "perm": 8, "ds": 4, "dsw": 20, "vmem": 14, "store": 14, "salu": 4, "sync": 12, "br": 4, "mfma": 0}
VALU_KINDS = ("valu", "trans", "perm")

class Op:
    def __init__(self, text, kind, rd=(), wr=(), tag="", nb=None, extra=None):
        self.text, self.kind, self.rd, self.wr, self.tag = text, kind, list(rd), list(wr), tag
        self.cost = COST[kind]
        self.preds, self.succs, self.waitfor = [], [], []
        self.due, self.nb, self.gap, self.pos = 10**9, nb, None, None
        self.extra = extra or {}

def hazard_dist(p, c, dep, reg):
    d = 0
    r = isreg(reg)
    if p.kind in VALU_KINDS and r and dep == "RAW":
        if c.kind in ("mfma", "perm"): d = 2
        if p.kind == "trans" and c.kind != "trans": d = max(d, 1)
    if p.kind == "mfma" and r:
        if dep in ("RAW", "WAW"):
            if c.kind == "mfma":
                if dep == "RAW" and reg in c.extra["ab"]: d = 12
                if dep == "WAW" and reg not in c.extra["c"]: d = 12
            elif c.kind in ("br", "sync"): d = 0
            else: d = 12
        if dep == "WAR" and reg in p.extra["c"] and c.kind in VALU_KINDS: d = max(d, 7)
    if p.kind in ("store", "dsw") and dep == "WAR" and r: d = max(d, 2)
    if reg == "m0" and dep == "RAW": d = 1
    if reg == "vcc" and dep == "RAW" and c.kind == "br": d = 1
    return d

class Gen:
    def __init__(self, P):
        self.P = P
        self.ops = []
        self.handlers = {}
        self.tramps = []
        self.qreads = {}
        self.stg_readers = []

    def add(self, op):
        op.idx = len(self.ops); self.ops.append(op); return op

    def build(self):
        P = self.P
        a, b = P["a"], P["b"]
        pos = []
        for j in range(0, a): pos.append((j, [0]))
        for j in range(a, b): pos.append((j, [0, 1]))
        mids = list(P["mids"])
        for j in range(b, 16): pos.append((j, [0] if j in mids else [0, 1, 2]))
        u = P["unpair"]
        for j in mids: pos.append((j, [1, 2]))
        for j in range(0, u): pos.append((j, [1]))
        for j in range(u, a): pos.append((j, [1, 2]))
        for j in list(range(0, u)) + list(range(a, b)): pos.append((j, [2]))
        self.pos = pos
        blocks = []
        cnt = [0, 0, 0]
        for p, (j, ts) in enumerate(pos):
            for k, T in enumerate(ts):
                blocks.append(dict(T=T, j=j, p=p, fp=(k == 0), ft=(cnt[T] == 0), lt=(cnt[T] == 15)))
                cnt[T] += 1
        assert cnt == [16, 16, 16]
        self.blocks = blocks
        NB = len(blocks)
        keep = min(P["keep"], b)
        self.unit = []; last_in_slot = {}
        lastuse = {}
        for p, (j, ts) in enumerate(pos): lastuse[j] = p
        where = {}
        self.refetch = set()
        for p, (j, ts) in enumerate(pos):
            if j in where:
                slot = where[j]; load = False; prev = None
            else:
                pinned = {where[jj] for jj in where if (jj < keep or jj in mids) and lastuse[jj] > p}
                cand = sorted((last_in_slot.get(sl, -1), sl) for sl in range(NSLOT) if sl not in pinned)
                slot = cand[0][1]; load = True; prev = last_in_slot.get(slot)
                if p > 15 and P["refetch_once"]: self.refetch.add(p)
            for jj in [x for x in where if where[x] == slot and x != j]: del where[jj]
            where[j] = slot
            last_in_slot[slot] = p
            self.unit.append((slot, load, prev))
        self.qk = []; self.pv = []
        self.kreads = {}; self.vreads = {}
        for n, B in enumerate(blocks):
            T, p = B["T"], B["p"]
            slot, load, prev = self.unit[p]
            srcp = p if load else max(q for q in range(p) if pos[q][0] == pos[p][0] and self.unit[q][1])
            S = V_S + 16 * (n % 2); Pp = V_P + 8 * (n % 2); LB = V_LB + (n % 2)
            NM = V_NEGM + 16 * T; Q = V_Q + 32 * T; O = A_O + 64 * T
            same_prev = n > 0 and blocks[n - 1]["T"] == T
            same_next = n + 1 < NB and blocks[n + 1]["T"] == T
            if B["ft"]: self.prescale(T)
            if B["fp"]:
                self.kreads[p] = [self.add(Op(f"ds_read_b128 {at(A_K+4*s,4)}, v{V_KADDR+s} offset:{slot*8192}", "ds", rd=[f"visK{srcp}"],
                                              wr=ar(A_K + 4 * s, 4), tag=f"K{p}.{s}", extra=dict(lds=("K", slot, p)))) for s in range(8)]
            explicit = B["ft"] or (same_prev and blocks[n - 1]["ft"])
            q = []
            for s in range(8):
                if s == 0: ctext = "0" if explicit else vt(NM, 16); crd = [] if explicit else vr(NM, 16)
                else: ctext = vt(S, 16); crd = vr(S, 16)
                ab = ar(A_K + 4 * s, 4) + vr(Q + 4 * s, 4)
                q.append(self.add(Op(f"v_mfma_f32_32x32x16_bf16 {vt(S,16)}, {at(A_K+4*s,4)}, {vt(Q+4*s,4)}, {ctext}", "mfma",
                                     rd=ab + crd, wr=vr(S, 16), tag=f"QK{n}.{s}", extra=dict(ab=set(ab), c=set(crd)))))
            self.qk.append(q)
            gate = [f"chk{n-1}"] if (same_prev and not blocks[n - 1]["ft"]) else []
            if B["ft"]:
                H = V_H; tg = f"mx{n}"
                self.add(Op(f"v_max3_f32 v{H}, v{S}, v{S+1}, v{S+2}", "valu", rd=vr(S, 3), wr=[f"v{H}"], tag=tg))
                self.add(Op(f"v_max3_f32 v{H+1}, v{S+3}, v{S+4}, v{S+5}", "valu", rd=vr(S + 3, 3), wr=[f"v{H+1}"], tag=tg))
                for r in range(6, 16, 4):
                    self.add(Op(f"v_max3_f32 v{H}, v{H}, v{S+r}, v{S+r+1}", "valu", rd=[f"v{H}"] + vr(S + r, 2), wr=[f"v{H}"], tag=tg))
                    if r + 3 < 16:
                        self.add(Op(f"v_max3_f32 v{H+1}, v{H+1}, v{S+r+2}, v{S+r+3}", "valu", rd=[f"v{H+1}"] + vr(S + r + 2, 2), wr=[f"v{H+1}"], tag=tg))
                self.add(Op(f"v_max_f32 v{H}, v{H}, v{H+1}", "valu", rd=vr(H, 2), wr=[f"v{H}"], tag=tg))
                self.add(Op(f"v_mov_b32 v{H+1}, v{H}", "valu", rd=[f"v{H}"], wr=[f"v{H+1}"], tag=tg))
                self.add(Op(f"v_permlane32_swap_b32 v{H}, v{H+1}", "perm", rd=vr(H, 2), wr=vr(H, 2), tag=tg))
                self.add(Op(f"v_max_f32 v{H}, v{H}, v{H+1}", "valu", rd=vr(H, 2), wr=[f"v{H}"], tag=tg))
                self.add(Op(f"v_sub_f32 v{NM}, 0, v{H}", "valu", rd=[f"v{H}"], wr=[f"v{NM}"], tag=f"nm{n}"))
                for r in range(1, 16):
                    self.add(Op(f"v_mov_b32 v{NM+r}, v{NM}", "valu", rd=[f"v{NM}"], wr=[f"v{NM+r}"], tag=f"nm{n}"))
            for k in range(8):
                E = V_E + 2 * (k % 4)
                for e in range(2):
                    r = S + 2 * k + e
                    if explicit:
                        self.add(Op(f"v_add_f32 v{r}, v{NM}, v{r}", "valu", rd=[f"v{NM}", f"v{r}"] + gate, wr=[f"v{r}"], tag=f"sub{n}"))
                    self.add(Op(f"v_exp_f32 v{E+e}, v{r}", "trans", rd=[f"v{r}"] + gate, wr=[f"v{E+e}"], tag=f"exp{n}"))
                if k == 0:
                    self.add(Op(f"v_add_f32 v{LB}, v{E}, v{E+1}", "valu", rd=vr(E, 2), wr=[f"v{LB}"], tag=f"sum{n}"))
                else:
                    self.add(Op(f"v_add_f32 v{LB}, v{LB}, v{E}", "valu", rd=[f"v{LB}", f"v{E}"], wr=[f"v{LB}"], tag=f"sum{n}"))
                    self.add(Op(f"v_add_f32 v{LB}, v{LB}, v{E+1}", "valu", rd=[f"v{LB}", f"v{E+1}"], wr=[f"v{LB}"], tag=f"sum{n}"))
                self.add(Op(f"v_cvt_pk_bf16_f32 v{Pp+k}, v{E}, v{E+1}", "valu", rd=vr(E, 2), wr=[f"v{Pp+k}"], tag=f"cvt{n}"))
            chk = []
            if not B["ft"]:
                self.add(Op(f"v_cmp_lt_f32 vcc, s{S_THR}, v{LB}", "valu", rd=[f"v{LB}"], wr=["vcc"], tag=f"cmp{n}"))
                key = (T, n % 2, same_next)
                self.handlers[key] = True
                rd = ["vcc", f"v{LB}"] + vr(S, 16) + vr(Pp, 8) + ar(O, 64) + vr(NM, 16) + [f"v{V_L+T}"] + vr(V_H + 3, 3)
                self.tramps.append((n, key))
                B["br"] = self.add(Op(f"s_cbranch_vccnz L_tr{n}\nL_bk{n}:", "br", rd=rd, wr=[f"chk{n}"], tag=f"br{n}", extra=dict(same_next=same_next)))
                chk = [f"chk{n}"]
                self.add(Op(f"v_add_f32 v{V_L+T}, v{V_L+T}, v{LB}", "valu", rd=[f"v{V_L+T}", f"v{LB}"] + chk, wr=[f"v{V_L+T}"], tag=f"lacc{n}"))
            else:
                self.add(Op(f"v_mov_b32 v{V_L+T}, v{LB}", "valu", rd=[f"v{LB}"], wr=[f"v{V_L+T}"], tag=f"lacc{n}"))
            order = [(db, t) for db in range(4) for t in range(2)] if B["lt"] else [(db, t) for t in range(2) for db in range(4)]
            if B["fp"]:
                self.vreads[p] = []
                for (db, t) in order:
                    for u in range(2):
                        d = A_V + 4 * (4 * t + db) + 2 * u
                        self.vreads[p].append(self.add(Op(f"ds_read_b64_tr_b16 {at(d,2)}, v{V_VADDR+db} offset:{slot*8192+(16*t+8*u)*256}", "ds",
                                    rd=[f"visV{srcp}"], wr=ar(d, 2), tag=f"V{p}.{t}{db}{u}", extra=dict(lds=("V", slot, p)))))
            pv = []
            for (db, t) in order:
                D = O + 16 * db; A = A_V + 4 * (4 * t + db)
                first = B["ft"] and t == 0
                ab = ar(A, 4) + vr(Pp + 4 * t, 4); crd = [] if first else ar(D, 16)
                pv.append(self.add(Op(f"v_mfma_f32_32x32x16_bf16 {at(D,16)}, {at(A,4)}, {vt(Pp+4*t,4)}, {'0' if first else at(D,16)}", "mfma",
                                      rd=ab + crd + chk, wr=ar(D, 16), tag=f"PV{n}.{db}{t}", extra=dict(ab=set(ab), c=set(crd)))))
            self.pv.append(pv)
            if B["lt"]: self.epilogue(T, n == NB - 1)
        self.extra_edges = []
        for n, B in enumerate(blocks):
            if "br" in B and B["br"].extra["same_next"]:
                self.extra_edges.append((self.qk[n + 1][-1], B["br"]))

    def prescale(self, T):
        Q = V_Q + 32 * T
        self.qreads[T] = []
        for half in range(2):
            ld = [f"ldQ{T}.{4*half+i}" for i in range(4)]
            for s in range(4 * half, 4 * half + 4):
                self.qreads[T].append(self.add(Op(f"ds_read_b128 {vt(Q+4*s,4)}, v{V_QADDR+s%4} offset:{4096*half}", "ds", rd=ld + [f"stg{half}"],
                                                  wr=vr(Q + 4 * s, 4), tag=f"qr{T}")))
            for i in range(16 * half, 16 * half + 16):
                r = Q + i; t = V_PT + 2 * (i % 2); tg = f"ps{T}"
                self.add(Op(f"v_lshlrev_b32 v{t}, 16, v{r}", "valu", rd=[f"v{r}"], wr=[f"v{t}"], tag=tg))
                self.add(Op(f"v_and_b32 v{t+1}, s{S_MASK}, v{r}", "valu", rd=[f"v{r}"], wr=[f"v{t+1}"], tag=tg))
                self.add(Op(f"v_mul_f32 v{t}, s{S_C}, v{t}", "valu", rd=[f"v{t}"], wr=[f"v{t}"], tag=tg))
                self.add(Op(f"v_mul_f32 v{t+1}, s{S_C}, v{t+1}", "valu", rd=[f"v{t+1}"], wr=[f"v{t+1}"], tag=tg))
                self.add(Op(f"v_cvt_pk_bf16_f32 v{r}, v{t}, v{t+1}", "valu", rd=vr(t, 2), wr=[f"v{r}"], tag=tg))

    def epilogue(self, T, last):
        Q = V_Q + 32 * T; O = A_O + 64 * T; L = V_L + T; R = V_NEGM + 16 * T
        tg = f"ep{T}"
        V_EB = R
        R = (V_QADDR + 4, V_X + 1, V_X + 5)[T]
        self.add(Op(f"v_mov_b32 v{R+2}, v{L}", "valu", rd=[f"v{L}"], wr=[f"v{R+2}"], tag=tg))
        self.add(Op(f"v_permlane32_swap_b32 v{L}, v{R+2}", "perm", rd=[f"v{L}", f"v{R+2}"], wr=[f"v{L}", f"v{R+2}"], tag=tg))
        self.add(Op(f"v_add_f32 v{R+2}, v{L}, v{R+2}", "valu", rd=[f"v{L}", f"v{R+2}"], wr=[f"v{R+2}"], tag=tg))
        self.add(Op(f"v_rcp_f32 v{R}, v{R+2}", "trans", rd=[f"v{R+2}"], wr=[f"v{R}"], tag=tg))
        pkf = self.P[f"pk_from{T}"]
        pk = pkf < 8
        if pk: self.add(Op(f"v_mov_b32 v{R+1}, v{R}", "valu", rd=[f"v{R}"], wr=[f"v{R+1}"], tag=tg))
        c = 0
        for db in range(4):
            for jj in range(2):
                X = Q + 8 * (c % 2); OUT = Q + 16 + 4 * (c % 4); c += 1
                for i in range(8):
                    self.add(Op(f"v_accvgpr_read_b32 v{X+i}, a{O+16*db+8*jj+i}", "valu", rd=[f"a{O+16*db+8*jj+i}"], wr=[f"v{X+i}"], tag=tg))
                if 2 * db + jj >= pkf:
                    for i in range(0, 8, 2):
                        self.add(Op(f"v_pk_mul_f32 {vt(X+i,2)}, {vt(R,2)}, {vt(X+i,2)}", "valu", rd=vr(R, 2) + vr(X + i, 2), wr=vr(X + i, 2), tag=tg))
                else:
                    for i in range(8):
                        self.add(Op(f"v_mul_f32 v{X+i}, v{R}, v{X+i}", "valu", rd=[f"v{R}", f"v{X+i}"], wr=[f"v{X+i}"], tag=tg))
                for i in range(4):
                    self.add(Op(f"v_cvt_pk_bf16_f32 v{OUT+i}, v{X+2*i}, v{X+2*i+1}", "valu", rd=vr(X + 2 * i, 2), wr=[f"v{OUT+i}"], tag=tg))
                sidx = 2 * db + jj; half = sidx // 4
                if T in self.P["direct"]:
                    self.add(Op(f"buffer_store_dwordx4 {vt(OUT,4)}, v{V_QADDR+7}, s[{S_SRDO}:{S_SRDO+3}], s{S_T+2*T} offen offset:{32*sidx}{self.P['dflag']}",
                                "store", rd=vr(OUT, 4), tag=tg + "s"))
                    continue
                self.add(Op(f"ds_write_b128 v{V_QADDR+sidx%4}, {vt(OUT,4)} offset:{4096*half}", "dsw", rd=vr(OUT, 4), wr=[f"stg{half}"], tag=tg))
                if sidx % 4 == 3:
                    for i in range(4):
                        B_ = (V_EB if half == 0 else Q) + 4 * i
                        self.add(Op(f"ds_read_b128 {vt(B_,4)}, v{V_SLIN} offset:{4096*half+1024*i}", "ds", rd=[f"stg{half}"], wr=vr(B_, 4), tag=tg + "r"))
                    for i in range(4):
                        B_ = (V_EB if half == 0 else Q) + 4 * i
                        self.add(Op(f"buffer_store_dwordx4 {vt(B_,4)}, v{V_QOFF+i}, s[{S_SRDO}:{S_SRDO+3}], s{S_T+2*T+half} offen offset:{1024*i}{self.P['stflag']}",
                                    "store", rd=vr(B_, 4), tag=tg + "s"))

    def load_ops(self, item):
        kind, x = item
        ops = []
        if kind == "Q":
            T, half, pieces = x
            ops.append(Op(f"s_add_u32 m0, s{S_SW}, {4096*half}", "salu", wr=["m0"], tag=f"m0Q{T}"))
            for i in pieces:
                ops.append(Op(f"buffer_load_dwordx4 v{V_QOFF+i}, s[{S_SRDQ}:{S_SRDQ+3}], s{S_T+2*T+half} offen offset:{1024*i}{self.P['qflag']} lds", "vmem",
                              rd=["m0"], wr=[f"ldQ{T}.{4*half+i}"], tag=f"ldQ{T}.{4*half+i}", extra=dict(kb=4.0)))
            if T > 0:
                for o in ops: o.waitfor = list(self.qreads[T - 1][4 * half:4 * half + 4])
        elif kind == "PF":
            ops.append(Op(f"global_load_dword v{V_PF}, v{V_PF+1+x}, s[{S_PC}:{S_PC+1}]", "vmem", tag="pf", extra=dict(kb=0.5)))
        else:
            p = x; slot, load, prev = self.unit[p]; j = self.pos[p][0]
            base = (KREG if kind == "K" else VREG) + slot * 8192
            srd = S_SRDK if kind == "K" else S_SRDV
            fill = (kind, slot, p, prev)
            again = any(self.pos[q][0] == j and self.unit[q][1] for q in range(p + 1, len(self.pos)))
            kvf = "" if (again and self.P["kv_keep_again"]) else self.P["kvflag"]
            ops.append(Op(f"s_add_u32 m0, s{S_WOFF}, {base}", "salu", wr=["m0"], tag=f"m0{kind}{p}", extra=dict(guard=fill)))
            for xx in range(2):
                va = V_DMAK + xx if kind == "K" else V_DMAV
                ops.append(Op(f"buffer_load_dwordx4 v{va}, s[{srd}:{srd+3}], s{S_J+j} offen offset:{1024*xx}{kvf} lds", "vmem", rd=["m0"],
                              wr=[f"dma{kind}{p}.{xx}"], tag=f"dma{kind}{p}.{xx}", extra=dict(fill=fill, guard=fill, kb=self.P["kv_kb"])))
        return ops

    def schedule(self):
        P = self.P
        NB = len(self.blocks)
        bb = []; fgg = {}
        J = next(n for n, B in enumerate(self.blocks) if B["T"] == 1)
        groups = []
        for n in range(-1, NB + 1):
            qn = n + 1 if n + 1 < NB else None; pn = n - 1 if n >= 1 else None
            if P["drain"] and n == J - 1: groups += [(n, None, J - 2), (None, None, J - 1), (None, J, None)]
            elif P["drain"] and n == J: groups.append((n, J + 1, None))
            else: groups.append((n, qn, pn))
        for n, qn, pn in groups:
            q = list(self.qk[qn]) if qn is not None else []
            v = list(self.pv[pn]) if pn is not None else []
            if n is not None: fgg[n] = len(bb)
            if q and v:
                for ch in P["pattern"]: bb.append(q.pop(0) if ch == "Q" else v.pop(0))
                assert not q and not v
            else: bb += q + v
        for g, m in enumerate(bb): m.gap = g
        self.bb, self.fgg = bb, fgg
        NG = len(bb)
        npos = len(self.pos)
        gK = {p: min(m.gap for n, B in enumerate(self.blocks) if B["p"] == p for m in self.qk[n]) for p in range(npos)}
        gV = {p: min(m.gap for n, B in enumerate(self.blocks) if B["p"] == p for m in self.pv[n]) for p in range(npos)}
        gT = {T: min(m.gap for n, B in enumerate(self.blocks) if B["T"] == T for m in self.qk[n]) for T in range(3)}
        LEAD = P["lead"]
        units = []
        for p in range(npos):
            if self.unit[p][1]: units += [(gK[p] - LEAD - 1, ("K", p)), (gV[p] - LEAD - 1, ("V", p))]
        qneed = {0: -100, 1: gT[1] - P["ps1_early"], 2: gT[2] - P["ps2_early"]}
        order_key = {}
        for T in range(3):
            n0, n1 = qneed[T] - P["q_bias"] - P["q_split"], qneed[T] - P["q_bias"]
            if T == 0 or not P[f"q{T}_spread"]:
                units += [(n0, ("Q", (T, 0, (0, 1, 2, 3)))), (n1, ("Q", (T, 1, (0, 1, 2, 3))))]
            else:
                g0 = P["q1_start"] if T == 1 else gT[1] + P["q2_start"]
                for i in range(8):
                    it = ("Q", (T, i // 4, (i % 4,)))
                    units.append((n0 if i < 4 else n1, it))
                    order_key[it] = min(g0 + (n1 - g0) * i / 8.0, n0 if i < 4 else n1)
        units = [((-200 if not P["q_first"] else -110) if it == ("K", 0) else g, it) for g, it in units]
        units.sort(key=lambda t: t[0])
        seq = [it for _, it in sorted(units, key=lambda t: order_key.get(t[1], t[0]))]
        q1 = [it for it in seq if it[0] == "Q" and it[1][0] == 1]
        rest = [it for it in seq if it not in q1]
        if seq.index(q1[0]) < 3 + P["kv_before_q1"] and not P["q1_spread"]:
            k = 3 + P["kv_before_q1"]
            seq = rest[:k] + q1 + rest[k:]
        for x in range(P["npf"]): seq.insert(P["pf_at"], ("PF", x))
        self.seq = seq
        lops = []; unit_last = {}
        for it in seq:
            o = self.load_ops(it); lops += o; unit_last[it] = o[-1]
        vm = [o for o in lops if o.kind == "vmem"]
        cum = 0; base = None
        for o in vm:
            cum += o.extra["kb"]; o.cum = cum
        base = max(unit_last[("Q", (0, 0, (0, 1, 2, 3)))].cum, unit_last[("K", 0)].cum)
        for o in vm: o.est = (o.cum - base) / P["rate"] - P["pro_gaps"]
        W = P["window"]
        needs = sorted((g, unit_last[it].est) for g, it in units if g > -50)
        def stall_at(g):
            return max([e - gg for gg, e in needs if gg <= g] + [0])
        self.stall_at = stall_at
        def to_gap(t):
            if t < 0: return t
            g = 0
            while g + stall_at(g) < t: g += 1
            return g
        for o in vm: o.estg = to_gap(o.est)
        for i, o in enumerate(vm):
            js = [x.estg for x in vm[:i] if x.cum <= o.cum - P["wkb"]]
            o.nb = -10**6 if i < P["window0"] else max([vm[i - W].estg if i >= W else -1, -1] + js[-1:])
        for i, o in enumerate(lops):
            if o.kind == "salu": o.nb = lops[i + 1].nb - 1
        self.late = []
        last = 0
        for g, it in units:
            if g > -50 and stall_at(g) > last + 0.5: self.late.append((it, g, round(stall_at(g) - last))); last = stall_at(g)
        syncs = []; rsync = None
        for g, it in units:
            if it[0] == "Q": continue
            if it[1] in self.refetch:
                if rsync is None: rsync = [g, [], g]; syncs.append(rsync)
                rsync[1].append(it); continue
            est = unit_last[it].estg + P["sync_margin"]
            want = g
            early = max(min(est, want), want - P["sync_early"])
            c = [s for s in syncs if early <= s[0] <= want or (s[0] <= want and want - s[0] <= P["sync_slack"] and est <= s[0])]
            if c: c[-1][1].append(it); continue
            syncs.append([early, [it], want])
        syncs.sort(key=lambda s: s[0])
        for o in lops: self.add(o)
        sops = []
        for g, us, want in syncs:
            rd = [f"dma{k}{p}.{x}" for k, p in us for x in range(2)]
            sops.append(self.add(Op("s_barrier", "sync", rd=rd, wr=[f"vis{k}{p}" for k, p in us], tag="sync" + ",".join(f"{k}{p}" for k, p in us), nb=g)))
        self.lops, self.sops = lops, sops
        self.lset = set(map(id, lops)); sset = set(map(id, sops))
        comp = [o for o in self.ops if id(o) not in self.lset and id(o) not in sset]
        self.comp = comp
        def link(p, c, d): c.preds.append((p, d)); p.succs.append(c)
        pseudo_w = {r: o for o in lops + sops for r in o.wr if r != "m0"}
        lastw, readers = {}, {}
        for o in comp:
            for r in o.rd:
                if r in pseudo_w: link(pseudo_w[r], o, 0)
                elif r in lastw: link(lastw[r], o, hazard_dist(lastw[r], o, "RAW", r))
            for r in o.wr:
                if r in lastw: link(lastw[r], o, hazard_dist(lastw[r], o, "WAW", r))
                for q in readers.get(r, []):
                    if q is not o: link(q, o, hazard_dist(q, o, "WAR", r))
            for r in o.rd: readers.setdefault(r, []).append(o)
            for r in o.wr: lastw[r] = o; readers[r] = []
        for p_, c_ in self.extra_edges: link(p_, c_, 0)
        for T in range(3):
            ps = [o for o in comp if o.tag == f"ps{T}"]
            if T in P["half_order"]:
                for o in self.qreads[T][4:]: link(ps[len(ps) // 2 - 1], o, 0); link(ps[len(ps) // 2 - 6], o, 0)
        prev = None; m0w = None
        for o in lops:
            if prev is not None: link(prev, o, 0)
            if o.kind == "salu": m0w = o
            if "m0" in o.rd: link(m0w, o, 1)
            for w in o.waitfor: link(w, o, 0)
            prev = o
        prev = None
        for o in sops:
            for r in o.rd: link(pseudo_w[r], o, 0)
            if prev is not None: link(prev, o, 0)
            prev = o
        for o in sops:
            if any(int(re.sub(r"[^0-9]", "", r.split(".")[0])) in self.refetch for r in o.rd):
                for st0 in comp:
                    if st0.tag == "ep0s": link(o, st0, 0)
                o.nb = None
        for o in lops:
            if o.kind == "vmem" and o.extra.get("fill") and o.extra["fill"][2] in self.refetch: o.extra["lead"] = P["refetch_lead"]
        for p in range(npos):
            for o in self.kreads[p] + self.vreads[p]:
                o.nb = min(s.gap for s in o.succs if s.kind == "mfma") - P["read_early"]
        for T in (1, 2):
            for i, o in enumerate(self.qreads[T]): o.nb = qneed[T] - (P["q_split"] if i < 4 else 0)
        order = self.toposort()
        for T in range(3):
            eo = [o for o in self.ops if o.tag.startswith(f"ep{T}")]
            g0 = max(m.gap for n, B in enumerate(self.blocks) if B["T"] == T for m in self.pv[n])
            span = P[f"ep{T}_span"]
            for i, o in enumerate(eo): o.due = g0 + 1 + ((span * i) // len(eo) if g0 < NG - 1 else i)
        for o in reversed(order):
            if o.kind == "mfma": o.due = o.gap; continue
            d = o.due
            for s in o.succs:
                if s.kind == "mfma": dd = s.gap - (LEAD if o.kind == "ds" else 1)
                else:
                    dd = s.due
                    if s.kind not in VALU_KINDS and o.kind in VALU_KINDS: dd -= 1
                    if o.kind == "vmem" and id(s) not in self.lset: dd -= o.extra.get("lead", P["vm_lead"])
                    if o.kind == "ds" and s.kind != "ds": dd -= LEAD
                    if o.kind == "salu": dd -= 1
                d = min(d, dd)
            o.due = d
        for o in self.ops:
            if o.due >= 10**8: o.due = NG + 1000 + o.idx
        for o in sops:
            if o.nb is None: o.nb = o.due - 2
        self.emit(order)

    def toposort(self):
        cnt = {id(o): 0 for o in self.ops}
        for o in self.ops:
            for s in o.succs: cnt[id(s)] += 1
        st = [o for o in self.ops if cnt[id(o)] == 0]
        out = []
        while st:
            o = st.pop(); out.append(o)
            for s in o.succs:
                cnt[id(s)] -= 1
                if cnt[id(s)] == 0: st.append(s)
        assert len(out) == len(self.ops), "dependency cycle"
        return out

    def emit(self, order):
        P = self.P
        lin = []; vmq = []; dsq = []; done = set()
        st = dict(nops=0, slot=0)
        slot_readers = {}
        for o in self.ops:
            if o.kind == "ds" and "lds" in o.extra:
                slot_readers.setdefault((o.extra["lds"][0], o.extra["lds"][2]), []).append(o)
        released = set()
        def put(text, op=None):
            lin.append((text, op))
            if op is not None: op.pos = st["slot"]
            st["slot"] += (int(text.split()[1]) + 1) if text.startswith("s_nop") else (0 if text.startswith(";") else 1)
            if op is not None:
                for x in op.succs: x.nunp -= 1
        def need_wait(o):
            vm = lg = None
            rd = set(o.rd)
            for p, _ in o.preds:
                if id(p) in done: continue
                if p.kind == "vmem" and (set(p.wr) & rd):
                    k = len(vmq) - 1 - vmq.index(p); vm = k if vm is None else min(vm, k)
                if p.kind == "ds" and ((set(p.wr) & rd) or p in o.waitfor):
                    k = len(dsq) - 1 - dsq.index(p); lg = k if lg is None else min(lg, k)
            return vm, lg
        def do_wait(vm, lg):
            if vm is None and lg is None: return False
            t = "s_waitcnt"
            if vm is not None:
                t += f" vmcnt({vm})"
                while len(vmq) > vm: done.add(id(vmq.pop(0)))
            if lg is not None:
                lg = min(lg, 15); t += f" lgkmcnt({lg})"
                while len(dsq) > lg: done.add(id(dsq.pop(0)))
            put(t); return True
        def dist_short(o):
            n = st["slot"]
            return max([d - (n - p.pos - 1) for p, d in o.preds] + [0])
        def place(o):
            c = 0
            vm_, lg_ = need_wait(o)
            if vm_ is not None and id(o) not in self.lset:
                X = vmq[len(vmq) - 1 - vm_]
                gg = max(o.gap, 0)
                if hasattr(X, "estg") and (X.estg >= gg - 1 or o.gap < 0):
                    while vm_ < P["window"] - 1:
                        nx = next((x for x in self.lops if x.pos is None), None)
                        if nx is not None and (nx if nx.kind == "vmem" else nx.succs[0]).cum > X.cum + P["wkb"]: break
                        if nx is None or not ready(nx, o.gap, False) or any(id(w) not in done for w in nx.waitfor): break
                        nx.gap = o.gap; pending.remove(nx); c += place(nx)
                        if nx.kind == "vmem": vm_ += 1
            if (P["walk_pos"] == 1 and o is self.qreads[0][4]) or (P["walk_pos"] == 2 and o is self.qreads[1][0]) or (P["walk_pos"] == 3 and o is self.qreads[0][0]): put("; WALK")
            c += 4 if do_wait(*need_wait(o)) else 0
            k = dist_short(o)
            if k > 0: put(f"s_nop {k-1}"); c += 4 * k; st["nops"] += k
            put(o.text, o)
            if o.kind in ("vmem", "store"): vmq.append(o); assert len(vmq) <= 63
            if o.kind in ("ds", "dsw"): dsq.append(o)
            if o.kind == "sync":
                for key, rs in slot_readers.items():
                    if all(id(r) in done for r in rs): released.add(key)
            return c + o.cost
        for o in self.ops: o.nunp = 0
        for o in self.ops:
            for x in o.succs: x.nunp += 1
        stampgaps = {}
        if P["stamps"] == 1:
            for i, n in enumerate(P["stamp_groups"]): stampgaps[self.fgg[n]] = 3 + i
        pending = sorted([o for o in order if o.kind != "mfma"], key=lambda o: (o.due, o.idx))
        def ready(o, g, strict):
            if o.nunp: return False
            if strict and o.kind not in VALU_KINDS:
                for p, d in o.preds:
                    if p.kind in VALU_KINDS and p.gap == g: return False
            gd = o.extra.get("guard")
            if gd and gd[3] is not None and (gd[0], gd[3]) not in released: return False
            if o.kind in ("vmem", "store") and len(vmq) >= 62: return False
            return True
        def force(o, g):
            c = 0
            if o.pos is not None: return 0
            for p, _ in sorted(o.preds, key=lambda t: t[0].idx):
                if p.pos is None:
                    assert p.kind != "mfma", f"backbone order violates deps: {o.tag} needs {p.tag}"
                    c += force(p, g)
            if o.kind != "mfma":
                gd = o.extra.get("guard")
                if gd and gd[3] is not None and (gd[0], gd[3]) not in released:
                    rs = slot_readers[(gd[0], gd[3])]
                    assert all(r.pos is not None for r in rs), f"refill {o.tag} before its slot was read"
                    x = Op("s_barrier", "sync", tag="release"); x.nunp = 0; x.idx = -1; x.gap = g
                    x.preds = [(r, 0) for r in rs]; x.waitfor = rs
                    c += place(x)
                assert ready(o, g, False), f"cannot force {o.tag} at gap {g}"
                o.gap = g; pending.remove(o); c += place(o)
            return c
        g = -1
        for o in list(self.lops):
            if o.nb > -10**5 or not ready(o, g, False): break
            o.gap = g; pending.remove(o); place(o)
        put("; ---- prologue loads issued")
        pro = [o for o in pending if o.tag in ("qr0", "ps0")]
        pro.sort(key=lambda o: o.idx)
        pro = pro[:len(pro) // 2]
        k0 = [o for o in self.sops[:1]] + self.kreads[0]
        for i, o in enumerate(pro):
            force(o, g)
            if i == 3:
                for x in k0: force(x, g)
            if i > 8 and i % 6 == 0:
                nx = next((x for x in self.lops if x.pos is None), None)
                if nx is not None and len(vmq) < P["window_pro"] and sum(x.extra["kb"] for x in vmq) + 4 <= P["wkb"] + 8 and ready(nx, g, False) and all(id(w) in done for w in nx.waitfor):
                    force(nx, g)
                    if nx.kind == "salu": force(nx.succs[0], g)
        total = 0; self.gapcost = []; self.gaplog = []
        for g, m in enumerate(self.bb):
            c = force(m, g - 1)
            if do_wait(*need_wait(m)): c += 4
            k = dist_short(m)
            if k > 0: put(f"s_nop {k-1}"); c += 4 * k; st["nops"] += k
            if g > 0: self.gapcost[-1] = max(32, self.gapraw + c)
            if g in stampgaps: put(f"STAMP {stampgaps[g]}")
            put(m.text, m)
            used = 0; free_salu = True; log = []
            if g + 1 < len(self.bb):
                nx = self.bb[g + 1]
                if all(p.pos is not None for p, _ in nx.preds if p.kind == "ds"):
                    if do_wait(*need_wait(nx)): free_salu = False
            cap = P["cap"]
            if P["cap_soft"] < cap:
                need = 0; acc = 0; H = {}
                for o in pending:
                    if o.due > g + 170: break
                    acc += o.cost if o.kind not in ("salu", "br") else 0
                    need = max(need, acc / (max(o.due - g, 0) + 1))
                cap = min(cap, max(P["cap_soft"], 4 * math.ceil(need * P["cap_margin"] / 4)))
            for phase, nopok in ((0, False), (1, False), (1, True)):
                progress = True
                while progress:
                    progress = False
                    resv = sum(x.cost for x in pending[:60] if x.kind in VALU_KINDS and x.due <= g) if phase == 0 else 0
                    for o in pending:
                        if o.nunp: continue
                        isv = o.kind in VALU_KINDS
                        if isv != (phase == 1): continue
                        must = o.due <= g
                        if o.kind == "store" and g - st.get("store", -99) < P["store_gap"]: continue
                        if o.kind == "dsw" and g - st.get("dsw", -99) < P["dsw_gap"]: continue
                        if o.nb is not None and g < o.nb and not must and not (id(o) in self.lset and len(vmq) < P["window"] - 1 and sum(x.extra.get("kb", 4) for x in vmq) + 4 <= P["wkb"]): continue
                        if not ready(o, g, True):
                            gd = o.extra.get("guard")
                            if o.kind == "salu" and gd and (must or (gd[2] > 15 and used <= 8)) and all(r.pos is not None and (must or r.gap < g - 4) for r in slot_readers[(gd[0], gd[3])]):
                                used += force(o, g); log.append("rel+" + o.tag); progress = True; break
                            continue
                        cost = o.cost
                        if o.kind in ("salu", "br") and free_salu: cost = 0
                        if not must:
                            if used + cost + resv > max(cap, cost if used == 0 else 0): continue
                            if o.kind in ("vmem", "store", "dsw") and used > 4: continue
                            if o.kind == "ds" and used >= P["ds_per_gap"] * 4 and o.due > g + 2: continue
                            ds_ = dist_short(o)
                            if ds_ > 0 and (phase == 0 or not nopok or used + cost + 4 * ds_ > cap): continue
                            if o.kind != "sync" and o.tag[:2] != "qr":
                                w = need_wait(o)
                                if w[1] is not None and any(p.kind == "ds" and id(p) not in done and p.gap > g - P["lead"] and (set(p.wr) & set(o.rd) or p in o.waitfor) for p, _ in o.preds): continue
                        o.gap = g; pending.remove(o)
                        st[o.kind] = g
                        cc = place(o)
                        if o.kind in ("salu", "br") and free_salu: cc -= 4
                        if not isv: free_salu = False
                        used += cc; log.append(o.tag)
                        progress = True
                        break
            if cap - used >= 4:
                blocked = [dist_short(o) for o in pending[:400] if o.kind in VALU_KINDS and not o.nunp and (o.nb is None or g + 1 >= o.nb)]
                blocked = [b_ - 1 for b_ in blocked if b_ > 1]
                if blocked:
                    k = min(min(blocked), (cap - used) // 4)
                    put(f"s_nop {k-1}"); used += 4 * k; log.append(f"nop{k}")
            self.gapraw = 8 + used
            self.gapcost.append(max(32, self.gapraw)); self.gaplog.append((m.tag, used, log))
        if P["stamps"]: put(f"STAMP {3+len(P['stamp_groups'])}")
        tail = 0
        tiss = {}
        pending.sort(key=lambda o: (0 if o.tag.startswith("ep1") else 1, o.idx) if P["tail_order"] else (o.due, o.idx))
        while pending:
            g = len(self.bb) + tail // 32
            pick = None
            for kinds in (("store", "ds", "dsw"), VALU_KINDS):
                for o in pending:
                    if o.nunp or o.kind not in kinds or dist_short(o) > 0: continue
                    if o.kind == "store" and tail - tiss.get("store", -999) < P["tail_store_gap"]: continue
                    if any(p.kind == "ds" and id(p) not in done and tail - tiss.get(id(p), -999) < P["tail_lds"] and (set(p.wr) & set(o.rd)) for p, _ in o.preds): continue
                    pick = o; break
                if pick: break
            if pick is None: pick = next(o for o in pending if not o.nunp)
            tiss[id(pick)] = tail; tiss[pick.kind] = tail
            tail += force(pick, g)
        self.lin = lin
        self.stats = dict(backbone=sum(self.gapcost), tail=tail, nops=st["nops"], n=len(lin))

    def verify(self):
        lw = {}; want = {}
        trk = lambda r: isreg(r) or r in ("vcc", "stg0", "stg1")
        for o in self.comp:
            want[id(o)] = {r: lw.get(r) for r in o.rd if trk(r)}
            for r in o.wr: lw[r] = o
        lw = {}; rdrs = {}; slot = 0; vm, lg = [], []; done = set()
        vis = {}; inflight = {}; reads_since = {}; posn = {}
        for t, o in self.lin:
            if o is None:
                m = re.match(r"s_nop (\d+)", t)
                if m: slot += int(m.group(1)) + 1; continue
                if t.startswith("STAMP"): slot += 1; continue
                if t.startswith("s_waitcnt"):
                    m = re.search(r"vmcnt\((\d+)\)", t)
                    if m:
                        while len(vm) > int(m.group(1)): done.add(id(vm.pop(0)))
                    m = re.search(r"lgkmcnt\((\d+)\)", t)
                    if m:
                        while len(lg) > int(m.group(1)): done.add(id(lg.pop(0)))
                    slot += 1
                continue
            posn[id(o)] = slot
            for w in o.waitfor: assert id(w) in done, f"{o.tag} issued before {w.tag} completed"
            for r in o.rd:
                p = lw.get(r)
                if trk(r):
                    assert want[id(o)][r] is p, f"value flow broken: {o.tag} reads {r}"
                    if p is not None:
                        assert slot - posn[id(p)] - 1 >= hazard_dist(p, o, "RAW", r), f"RAW hazard {p.tag}->{o.tag} on {r}"
                        if p.kind == "ds" and o.kind != "br": assert id(p) in done, f"{o.tag} reads {r} before {p.tag} completed"
                if r == "m0": assert slot - posn[id(p)] - 1 >= 1
                if r.startswith("ldQ") or r.startswith("dma"): assert id(p) in done, f"{o.tag} before {p.tag} landed"
            for r in o.wr:
                if trk(r):
                    p = lw.get(r)
                    if p is not None:
                        assert slot - posn[id(p)] - 1 >= hazard_dist(p, o, "WAW", r), f"WAW {p.tag}->{o.tag}"
                        if p.kind == "ds": assert id(p) in done, f"{o.tag} overwrites {r} while {p.tag} in flight"
                    for q in rdrs.get(r, []):
                        if q is not o: assert slot - posn[id(q)] - 1 >= hazard_dist(q, o, "WAR", r), f"WAR {q.tag}->{o.tag}"
            for r in o.rd: rdrs.setdefault(r, []).append(o)
            for r in o.wr: lw[r] = o; rdrs[r] = []
            if o.kind in ("vmem", "store"): vm.append(o); assert len(vm) <= 63
            if o.kind in ("ds", "dsw"): lg.append(o)
            if o.kind == "vmem" and o.extra.get("fill"):
                k, sl, p, prev = o.extra["fill"]
                assert not reads_since.get((k, sl)), f"{o.tag} refills slot with uncovered readers"
                vis.pop((k, sl), None)
                inflight.setdefault((k, sl), {}).setdefault(p, []).append(o)
            if o.kind == "sync":
                for key, d in inflight.items():
                    for p, l in list(d.items()):
                        if len(l) == 2 and all(id(x) in done for x in l): vis[key] = self.pos[p][0]; del d[p]
                for key in list(reads_since): reads_since[key] = [x for x in reads_since[key] if id(x) not in done]
            if o.kind == "ds" and "lds" in o.extra:
                k, sl, p = o.extra["lds"]
                assert vis.get((k, sl)) == self.pos[p][0], f"{o.tag} reads slot not visible / wrong tile"
                reads_since.setdefault((k, sl), []).append(o)
            slot += 1
        assert all(o.pos is not None for o in self.ops)

    def handler(self, key):
        T, par, same_next = key
        S = V_S + 16 * par; S2 = V_S + 16 * (par ^ 1); Pp = V_P + 8 * par; LB = V_LB + par
        NM = V_NEGM + 16 * T; O = A_O + 64 * T; H = V_H + 3
        L = [f"L_h{T}{par}{int(same_next)}:", "s_nop 15", "s_nop 15"]
        L.append(f"v_max3_f32 v{H}, v{S}, v{S+1}, 0")
        for r in range(2, 16, 2): L.append(f"v_max3_f32 v{H}, v{H}, v{S+r}, v{S+r+1}")
        L += [f"v_mov_b32 v{H+1}, v{H}", "s_nop 1", f"v_permlane32_swap_b32 v{H}, v{H+1}", "s_nop 1", f"v_max_f32 v{H}, v{H}, v{H+1}",
              f"v_sub_f32 v{H+1}, 0, v{H}", f"v_exp_f32 v{H+1}, v{H+1}"]
        for r in range(16): L.append(f"v_sub_f32 v{NM+r}, v{NM+r}, v{H}")
        for r in range(16): L.append(f"v_sub_f32 v{S+r}, v{S+r}, v{H}")
        if same_next:
            for r in range(16): L.append(f"v_sub_f32 v{S2+r}, v{S2+r}, v{H}")
        L.append(f"v_mul_f32 v{V_L+T}, v{V_L+T}, v{H+1}")
        for r in range(64):
            L += [f"v_accvgpr_read_b32 v{H+2}, a{O+r}", f"v_mul_f32 v{H+2}, v{H+2}, v{H+1}", f"v_accvgpr_write_b32 a{O+r}, v{H+2}"]
        L.append(f"v_mov_b32 v{LB}, 0")
        for k in range(8):
            L += [f"v_exp_f32 v{H}, v{S+2*k}", f"v_exp_f32 v{H+2}, v{S+2*k+1}", "s_nop 0", f"v_add_f32 v{LB}, v{LB}, v{H}",
                  f"v_add_f32 v{LB}, v{LB}, v{H+2}", f"v_cvt_pk_bf16_f32 v{Pp+k}, v{H}, v{H+2}"]
        L += ["s_nop 3", f"s_setpc_b64 s[{S_LINK}:{S_LINK+1}]"]
        return L

    def pf_text(self):
        P = self.P
        if P["npf"]: return f"s_getpc_b64 s[{S_PC}:{S_PC+1}]\nv_lshlrev_b32 v{V_PF+1}, 7, v0"
        if not P["pf_first"]: return ""
        if P["pf_first"] == 1:
            return f"""s_getpc_b64 s[{S_PC}:{S_PC+1}]
v_lshlrev_b32 v{V_PF+1}, 7, v0
global_load_dword v{V_PF}, v{V_PF+1}, s[{S_PC}:{S_PC+1}]"""
        d = P["pf_div"]; n = 64 // d; lg = int(math.log2(n))
        return f"""s_getpc_b64 s[{S_PC}:{S_PC+1}]
s_lshr_b32 s3, s2, 3
s_and_b32 s3, s3, {d-1}
s_lshl_b32 s3, s3, {15-int(math.log2(d))}
v_and_b32 v{V_PF+1}, {n-1}, v0
v_lshrrev_b32 v{V_PF+2}, 6, v0
v_lshl_add_u32 v{V_PF+1}, v{V_PF+2}, {lg}, v{V_PF+1}
v_lshl_add_u32 v{V_PF+1}, v{V_PF+1}, 7, s3
s_mov_b64 exec, {(1<<n)-1:#x}
global_load_dword v{V_PF}, v{V_PF+1}, s[{S_PC}:{S_PC+1}]
s_mov_b64 exec, -1"""

    def text(self):
        P = self.P
        c = math.log2(math.e) / math.sqrt(128.0)
        H = []; A = H.append
        X = V_X
        ts = lambda i: f"{'s_memtime' if P['stamps_cyc'] else 's_memrealtime'} s[{S_TS+2*i}:{S_TS+2*i+1}]" if P["stamps"] else ""
        A(f"; @launch grid=(256,1,1) block=(256,1,1) lds=163840")
        for l in DOC.strip().split("\n"): A("; " + l if l else ";")
        A('.amdgcn_target "amdgcn-amd-amdhsa--gfx950"')
        A(".text"); A(f".globl {KNAME}"); A(".p2align 12"); A(".p2align 8"); A(f".type {KNAME},@function"); A(f"{KNAME}:")
        pro = f"""
s_load_dwordx8 s[4:11], s[0:1], 0
s_cmp_ge_u32 s2, 256
s_cbranch_scc1 L_end
{ts(0)}
{self.pf_text()}
{"s_memtime s[60:61]" if P["stamps"] else ""}
v_lshrrev_b32 v{X}, 6, v0                   ; wave
v_and_b32 v{V_LANE}, 63, v0                 ; lane
s_and_b32 s3, s2, 7
v_readfirstlane_b32 s{S_WOFF}, v{X}
s_lshr_b32 s2, s2, 3
s_lshl_b32 s3, s3, 5
s_add_u32 s2, s2, s3
s_lshr_b32 s3, s2, 2
s_mul_i32 s{S_LINK}, s2, 98304
s_lshl_b32 s{S_LINK+1}, s3, 17
v_and_b32 v{X+3}, 15, v{V_LANE}             ; l%16
v_lshrrev_b32 v{X+4}, 4, v{V_LANE}          ; G = l/16
; q/o offsets x: (32w + 8x + l/8)*256 + ((l%8) ^ (G + 4(x%2)) ^ 4*(row&1))*16 - 1024x
v_lshrrev_b32 v{X+6}, 3, v{V_LANE}
v_lshl_add_u32 v{X+5}, v{X}, 5, v{X+6}
v_lshlrev_b32 v{X+8}, 8, v{X+5}
v_and_b32 v{X+7}, 7, v{V_LANE}
v_xor_b32 v{X+7}, v{X+4}, v{X+7}
v_and_b32 v{X+6}, 1, v{X+6}
v_lshlrev_b32 v{X+6}, 2, v{X+6}
v_xor_b32 v{X+7}, v{X+6}, v{X+7}
v_lshl_add_u32 v{V_QOFF}, v{X+7}, 4, v{X+8}
v_xor_b32 v{V_QOFF+1}, 64, v{V_QOFF}
v_add_u32 v{V_QOFF+2}, 0x800, v{V_QOFF}
v_add_u32 v{V_QOFF+1}, 0x400, v{V_QOFF+1}
v_add_u32 v{V_QOFF+3}, 0x800, v{V_QOFF+1}
; K dma offsets: row0 = 8w + G ; x: row0*256 + ((l%16)^((row0+4x)&15))*16
v_lshl_add_u32 v{X+5}, v{X}, 3, v{X+4}
v_and_b32 v{X+6}, 15, v{X+5}
v_xor_b32 v{X+7}, v{X+6}, v{X+3}
v_lshlrev_b32 v{X+8}, 8, v{X+5}
v_lshl_add_u32 v{V_DMAK}, v{X+7}, 4, v{X+8}
v_xor_b32 v{X+7}, 4, v{X+7}
v_lshl_add_u32 v{V_DMAK+1}, v{X+7}, 4, v{X+8}
s_lshl_b32 s{S_SW}, s{S_WOFF}, 13
s_add_u32 s{S_SW}, s{S_SW}, {STG}
s_lshl_b32 s{S_WOFF}, s{S_WOFF}, 11
s_mov_b32 s{S_T}, 0
s_movk_i32 s{S_T+1}, 128
s_mov_b32 s{S_J}, 0
s_mov_b32 s{S_SRDQ+2}, 98304
s_mov_b32 s{S_SRDQ+3}, 0x00020000
s_mov_b32 s{S_SRDK+2}, 131072
s_mov_b32 s{S_SRDK+3}, 0x00020000
s_waitcnt lgkmcnt(0)
{ts(1)}
s_add_u32 s{S_SRDK}, s6, s{S_LINK+1}
s_addc_u32 s{S_SRDK+1}, s7, 0
s_add_u32 s{S_SRDQ}, s4, s{S_LINK}
s_addc_u32 s{S_SRDQ+1}, s5, 0
"""
        pro2 = f"""
; V dma offset: row0*256 + ((l%16) ^ (G<<2))*16
v_lshlrev_b32 v{X+7}, 2, v{X+4}
v_xor_b32 v{X+7}, v{X+7}, v{X+3}
v_lshl_add_u32 v{V_DMAV}, v{X+7}, 4, v{X+8}
s_add_u32 s{S_SRDV}, s8, s{S_LINK+1}
s_addc_u32 s{S_SRDV+1}, s9, 0
s_mov_b32 s{S_SRDV+2}, 131072
s_mov_b32 s{S_SRDV+3}, 0x00020000
s_add_u32 s{S_SRDO}, s10, s{S_LINK}
s_addc_u32 s{S_SRDO+1}, s11, 0
s_mov_b32 s{S_SRDO+2}, 98304
s_mov_b32 s{S_SRDO+3}, 0x00020000
s_mov_b32 s{S_THR}, 0x{f32bits(2.0**40):08x}
s_mov_b32 s{S_C}, 0x{f32bits(c):08x}
s_mov_b32 s{S_MASK}, 0xffff0000
"""
        for t in range(2, 6): pro2 += f"s_mov_b32 s{S_T+t}, {32768*(t//2)+128*(t%2)}\n"
        for j in range(1, 16): pro2 += f"s_mov_b32 s{S_J+j}, {j*8192}\n"
        addr = f"""
{ts(2)}
{pro2}
v_and_b32 v{X+1}, 31, v{V_LANE}             ; l%32
v_lshrrev_b32 v{X+2}, 5, v{V_LANE}          ; h
v_lshlrev_b32 v{X+8}, 8, v{X+1}
v_xor_b32 v{X+7}, v{X+2}, v{X+3}
v_lshl_add_u32 v{V_KADDR}, v{X+7}, 4, v{X+8}
"""
        for s in range(1, 8): addr += f"v_xor_b32 v{V_KADDR+s}, {32*s}, v{V_KADDR}\n"
        addr += f"""; staging fragment addresses: q*128 + ((2s+h) ^ ((q>>1)&7) ^ 4*(q&1))*16 + base
v_bfe_u32 v{X+7}, v{V_LANE}, 1, 3
v_xor_b32 v{X+7}, v{X+2}, v{X+7}
v_and_b32 v{X+8}, 1, v{V_LANE}
v_lshlrev_b32 v{X+8}, 2, v{X+8}
v_xor_b32 v{X+7}, v{X+8}, v{X+7}
v_lshlrev_b32 v{X+8}, 7, v{X+1}
v_lshl_add_u32 v{X+8}, v{X+7}, 4, v{X+8}
v_add_u32 v{V_QADDR}, s{S_SW}, v{X+8}
"""
        for s in range(1, 4): addr += f"v_xor_b32 v{V_QADDR+s}, {32*s}, v{V_QADDR}\n"
        addr += f"""
v_lshl_add_u32 v{V_QADDR+7}, v{X}, 5, v{X+1}
v_lshlrev_b32 v{V_QADDR+7}, 8, v{V_QADDR+7}
v_lshl_add_u32 v{V_QADDR+7}, v{X+2}, 4, v{V_QADDR+7}
v_lshlrev_b32 v{V_SLIN}, 4, v{V_LANE}
v_add_u32 v{V_SLIN}, s{S_SW}, v{V_SLIN}
; V fragment addresses: VREG + (4h+r)*256 + (db^r)*64 + 32(G%2) + 16(c%2) + 8(c/2);  r=(l%16)/4, c=l%4
v_lshrrev_b32 v{X+5}, 2, v{X+3}             ; r
v_lshl_add_u32 v{X+6}, v{X+2}, 2, v{X+5}    ; 4h + r
v_lshlrev_b32 v{X+6}, 8, v{X+6}
v_and_b32 v{X+7}, 1, v{X+4}
v_lshl_add_u32 v{X+6}, v{X+7}, 5, v{X+6}
v_and_b32 v{X+7}, 1, v{V_LANE}
v_lshl_add_u32 v{X+6}, v{X+7}, 4, v{X+6}
v_bfe_u32 v{X+7}, v{V_LANE}, 1, 1
v_lshl_add_u32 v{X+6}, v{X+7}, 3, v{X+6}
v_add_u32 v{X+6}, {VREG}, v{X+6}
v_lshl_add_u32 v{V_VADDR}, v{X+5}, 6, v{X+6}
v_xor_b32 v{V_VADDR+1}, 64, v{V_VADDR}
v_xor_b32 v{V_VADDR+2}, 0x80, v{V_VADDR}
v_xor_b32 v{V_VADDR+3}, 0xc0, v{V_VADDR}
"""
        def block(txt):
            for l in txt.strip().split("\n"):
                if l.strip(): A("    " + l)
        block(pro)
        for t, o in self.lin:
            if t.startswith("STAMP"): A("    " + ts(int(t.split()[1]))); continue
            if t.startswith("; ---- prologue loads issued"): block(addr); A("    ; WALK" if P["walk_pos"] == 0 else "    ;"); continue
            if t == "; WALK": A("    ; WALK"); continue
            for l in t.split("\n"):
                if l.endswith(":"): A(l)
                else: A("    " + l + (f"    ; {o.tag}" if (o is not None and P["comments"]) else ""))
        A("    ; ENDMAIN")
        if P["stamps"]:
            ns = 3 + len(P["stamp_groups"]) + 1
            dst = 32 if P["stamps_dbg"] else 40
            block(f"""{ts(ns)}
s_waitcnt vmcnt(0)
{ts(ns+1)}
s_memtime s[4:5]
s_load_dwordx2 s[6:7], s[0:1], {dst}
s_waitcnt lgkmcnt(0)
s_sub_u32 s4, s4, s60
s_mov_b32 s8, s6
s_mov_b32 s9, s7
s_mov_b32 s10, {64 if P["stamps_dbg"] else 0x100000}
s_mov_b32 s11, 0x00020000
s_lshl_b32 s3, s2, 9
s_lshr_b32 s5, s{S_WOFF}, 4
s_add_u32 s3, s3, s5""")
            if P["stamps_dbg"]: block(f"s_sub_u32 s3, s3, {P['stamps_dbg']*512}")
            sel = list(range(ns + 2))
            if P["stamps_dbg"]: sel = [2] + list(range(3, 15)) + [17, 18, 19]
            for k, i in enumerate(sel):
                if P["stamps_dbg"]: block(f"s_sub_u32 s5, s{S_TS+2*i}, s{S_TS}\nv_mov_b32 v1, s5")
                else: block(f"v_mov_b32 v1, s{S_TS+2*i}")
                block(f"v_mov_b32 v2, s3\nbuffer_store_dword v1, v2, s[8:11], 0 offen offset:{4*k}")
            if not P["stamps_dbg"]: block(f"v_mov_b32 v1, s4\nv_mov_b32 v2, s3\nbuffer_store_dword v1, v2, s[8:11], 0 offen offset:124")
        A("L_end:"); A("    s_endpgm")
        for n, key in self.tramps:
            A(f"L_tr{n}:")
            A(f"    s_call_b64 s[{S_LINK}:{S_LINK+1}], L_h{key[0]}{key[1]}{int(key[2])}")
            A(f"    s_branch L_bk{n}")
        for key in sorted(self.handlers):
            for l in self.handler(key): A(l if l.endswith(":") else "    " + l)
        A("    s_endpgm")
        A('.section .rodata,"a"'); A(".p2align 6"); A(f".amdhsa_kernel {KNAME}")
        A("  .amdhsa_next_free_vgpr 512"); A(f"  .amdhsa_next_free_sgpr {102 if P['stamps'] else 64}"); A("  .amdhsa_accum_offset 256")
        A("  .amdhsa_group_segment_fixed_size 0"); A("  .amdhsa_kernarg_size 48"); A("  .amdhsa_user_sgpr_count 2")
        A("  .amdhsa_user_sgpr_kernarg_segment_ptr 1"); A("  .amdhsa_system_sgpr_workgroup_id_x 1"); A(".end_amdhsa_kernel")
        return "\n".join(H) + "\n"

DOC = """
GQA attention forward, generated by my own scheduler script (static list scheduling around a fixed MFMA sequence).
One workgroup (4 waves, one per SIMD) per query head; the 4 heads sharing a KV head sit on one XCD (speed only).
Each wave owns 3 tiles (T0,T1,T2) of 32 query rows. K/V tiles of 32 keys stream through LDS by LDS-DMA (XOR-swizzled);
S^T = K.Q^T and O^T = V^T.P^T use 32x32x16 bf16 MFMAs, so every lane owns one query row of S, P, O, l and m.
The tiles start and finish staggered (T0 first) so that loads, compute and stores overlap.
Softmax: Q is pre-multiplied by log2(e)/sqrt(D); the row max m is the true max of the row's first key tile and enters the
next S accumulations as the C operand (-m). After every key tile the tile's row sums are checked against 2^40; if any row
exceeds it (or overflows) the out-of-line handler L_h* recomputes the true running max from the intact scores, rescales
O and l, and redoes that tile's exponentials - an online softmax with a lazy max update.
L_stub*: never-taken branches (SCC is 0 in the main flow) visited once at start-up to warm the instruction fetch path.
"""

DEFAULT = dict(a=2, b=8, keep=5, unpair=0, drain=1, walk_pos=0, q1_spread=0, q2_spread=0, q1_start=8, q2_start=8, kv_keep_again=0, direct=(), dflag=" nt", mids=(), q_first=0, ep0_span=60, ep1_span=40, ep2_span=0, pattern="QQPQQPQQPQQPPPPP", lead=4, read_early=14, sync_slack=40, sync_early=12, sync_margin=8, vm_lead=6, refetch_lead=50, refetch_once=1, half_order=(0, 1),
               ps1_early=-2, ps2_early=80, q_bias=0, q_split=20, pf_at=4, npf=0, pf_first=2, pf_div=4, rate=0.31, pro_gaps=12, window=12, wkb=20, window0=10, kv_before_q1=4, window_pro=14, kv_kb=1.0, cap=24, cap_soft=20, cap_margin=1.2, ds_per_gap=2, store_gap=3, tail_order=1, tail_store_gap=40, tail_lds=100, dsw_gap=2,
               stflag=" nt", qflag=" nt", kvflag=" nt", comments=True, pk_from0=8, pk_from1=8, pk_from2=2, stub_offs=(0,), stamps=0, stamps_cyc=0, stamps_dbg=0,
               stamp_groups=(-1, 0, 1, 3, 5, 6, 9, 12, 18, 24, 33, 39, 45, 48))

def generate(**kw):
    P = dict(DEFAULT); P.update(kw)
    g = Gen(P); g.build(); g.schedule(); g.verify()
    return g

def insn_sizes(lines):
    import subprocess, tempfile, os
    marked = []
    for i, l in enumerate(lines):
        marked.append(f"Lm_{i}:"); marked.append(l)
    end = next(i for i, l in enumerate(lines) if l.startswith("L_end:"))
    src = "\n".join(marked[:2 * end]) + f"\nLm_{end}:\nL_end:\n" + "\n".join(lines[end + 1:]) + "\n"
    d = tempfile.mkdtemp()
    open(d + "/a.s", "w").write(src)
    r = subprocess.run(["clang", "-x", "assembler", "-target", "amdgcn-amd-amdhsa", "-mcpu=gfx950", "-c", d + "/a.s", "-o", d + "/a.o"],
                       capture_output=True, text=True)
    assert r.returncode == 0, r.stderr[:2000]
    o = subprocess.run(["llvm-objdump", "-t", d + "/a.o"], capture_output=True, text=True).stdout
    addr = {}
    for l in o.splitlines():
        f = l.split()
        if f and f[-1].startswith("Lm_"): addr[int(f[-1][3:])] = int(f[0], 16)
    return addr, end

def add_stubs(text, P):
    lines = text.split("\n")
    w = next(i for i, l in enumerate(lines) if l.strip() == "; WALK")
    nst = 8 * len(P["stub_offs"])
    walk = [f"    s_lshr_b32 s3, s{S_WOFF}, 11"]
    for k in range(4): walk += [f"    s_cmp_eq_u32 s3, {k}", f"    s_cbranch_scc1 L_stub{k}_0"]
    walk += ["L_walk_done:", "    s_cmp_eq_u32 s3, 99"]
    probe = lines[:w] + [l.replace("L_stub%d_0" % k, "L_walk_done") if "L_stub" in l else l for l in walk for k in [int(re.search(r"L_stub(\d)", l).group(1)) if "L_stub" in l else 0]] + lines[w + 1:]
    addr, end = insn_sizes(probe)
    start = next(i for i, l in enumerate(probe) if l.startswith(KNAME + ":"))
    base = addr[start + 1]
    first = w + len(walk)
    tg = sorted(4096 * p + o for p in range(1, 9) for o in P["stub_offs"])
    ins = []
    shift = 0; ti = 0
    endmain = next(i for i, l in enumerate(probe) if l.strip() == "; ENDMAIN")
    for i in range(first, endmain):
        while ti < len(tg) and addr[i] - base + shift >= tg[ti]:
            if probe[i].endswith(":") or probe[i].strip().startswith(";"): break
            ins.append(i); shift += 4; ti += 1
    n = len(ins)
    per = (n + 3) // 4
    chains = [list(range(k * per, min(n, (k + 1) * per))) for k in range(4)]
    out = list(probe)
    name = {}
    for k, ch in enumerate(chains):
        for j, x in enumerate(ch): name[x] = (f"L_stub{k}_{j}", f"L_stub{k}_{j+1}" if j + 1 < len(ch) else "L_walk_done")
    for x in reversed(range(n)):
        out[ins[x]:ins[x]] = [name[x][0] + ":", f"    s_cbranch_scc1 {name[x][1]}"]
    wl = [l if not ("L_stub" in l and not chains[int(re.search(r"L_stub(\d)", l).group(1))]) else l.replace(l.split()[-1], "L_walk_done") for l in walk]
    out[w:w + len(walk)] = wl
    return "\n".join(out), addr[end] - base + shift

def write(out, **kw):
    g = generate(**kw)
    hdr = open("standalone__gqa_softmax__near_ridge.s.ref").read().split("\n")
    hdr = [l for l in hdr if l.startswith("; Kernarg") or l.startswith(";   offset")]
    t = g.text()
    if g.P["stub_offs"]:
        t, g.stats["bytes"] = add_stubs(t, g.P)
    open(out, "w").write("\n".join(hdr) + "\n" + t)
    return g

if __name__ == "__main__":
    kw = {}; out = "k.s"; verbose = 0
    for a in sys.argv[1:]:
        k, v = a.split("=", 1)
        if k == "out": out = v; continue
        if k == "v": verbose = int(v); continue
        if k in ("stamp_groups", "half_order", "stub_offs", "mids", "direct"): kw[k] = tuple(int(x) for x in v.split(",") if x); continue
        try: v = int(v)
        except ValueError:
            try: v = float(v)
            except ValueError: v = v.replace("_", " ") if k.endswith("flag") else v
        kw[k] = v
    g = write(out, **kw)
    print(g.stats, "late:", g.late)
    ks = sorted(g.fgg)
    print("group costs:", [sum(g.gapcost[g.fgg[n]:(g.fgg[n+1] if n + 1 in g.fgg else None)]) for n in ks])
    if verbose:
        print(g.seq)
        for i, (t, u, l) in enumerate(g.gaplog): print(i, t, g.gapcost[i], " ".join(l))
```
